```python
import torch

def _softmax(x, axis=-1):
    return torch.softmax(x, dim=axis)
def _gelu(x):
    return torch.nn.functional.gelu(x, approximate="tanh")
def _silu(x):
    return torch.nn.functional.silu(x)
def _sigmoid(x):
    return torch.sigmoid(x)
def _layernorm(x, axis=-1, eps=1e-5):
    m = x.mean(dim=axis, keepdim=True)
    v = x.var(dim=axis, keepdim=True, unbiased=False)
    return (x - m) / torch.sqrt(v + eps)
def _scatter_add(tgt, idx, src, axis=0):
    return tgt.clone().index_add_(axis, idx, src)
def _segment_sum(src, seg, n):
    out = torch.zeros((n,) + src.shape[1:], dtype=src.dtype)
    return out.index_add_(0, seg, src)
def _pad(x, pw):
    flat = tuple(v for pair in reversed(pw) for v in pair)
    return torch.nn.functional.pad(x, flat)

kernel_name = 'sequential_preLN__sliding_block_cached__glu_gated_reglu__decode'

def setup_inputs():

    _w = (lambda a: (lambda t: t.to(torch.bfloat16) if t.is_floating_point() else t)(torch.as_tensor(a)))
    def _A_setup():
        B, Sq, D = 1, 1, 512
        Hq, Hkv, Sk, Dh = 32, 8, 32768, 128
        assert Hq % Hkv == 0, (Hq, Hkv)
        return {
            "x": _w((lambda *s: torch.randn(*s, dtype=torch.bfloat16) * 0.05)(B, Sq, D)),
            "k_cache": _w((lambda *s: torch.randn(*s, dtype=torch.bfloat16) * 1.6)(B, Hkv, Sk, Dh)),
            "v_cache": _w((lambda *s: torch.randn(*s, dtype=torch.bfloat16) * 0.8)(B, Hkv, Sk, Dh)),
            "wq": _w((lambda *s: torch.randn(*s, dtype=torch.bfloat16) * 1.6)(D, Hq * Dh) * (D ** -0.5)),
            "wo": _w((lambda *s: torch.randn(*s, dtype=torch.bfloat16) * 0.8)(Hq * Dh, D) * ((Hq * Dh) ** -0.5)),
        }
    _A_in = _A_setup()

    def _B_setup():
        B, S, D, F = 1, 1, 512, 1792
        return {
            "x": _w((lambda *s: torch.randn(*s, dtype=torch.bfloat16) * 0.05)(B, S, D)),
            "W_gate": _w((lambda *s: torch.randn(*s, dtype=torch.bfloat16) * 0.4)(D, F) * (2.0 / D) ** 0.5),
            "W_up": _w((lambda *s: torch.randn(*s, dtype=torch.bfloat16) * 0.4)(D, F) * (2.0 / D) ** 0.5),
            "W_down": _w((lambda *s: torch.randn(*s, dtype=torch.bfloat16) * 0.4)(F, D) * (1.0 / F) ** 0.5),
        }
    _B_in = _B_setup()

    return {
        "A_x": _A_in["x"],
        "A_k_cache": _A_in["k_cache"],
        "A_v_cache": _A_in["v_cache"],
        "A_wq": _A_in["wq"],
        "A_wo": _A_in["wo"],
        "B_x": _B_in["x"],
        "B_W_gate": _B_in["W_gate"],
        "B_W_up": _B_in["W_up"],
        "B_W_down": _B_in["W_down"],
    }

def reference(A_x, A_k_cache, A_v_cache, A_wq, A_wo, B_x, B_W_gate, B_W_up, B_W_down):
    def _A_ref(x, k_cache, v_cache, wq, wo):
        B, Sq, D = x.shape
        Hq, Dh = 32, 128
        Hkv, Sk = k_cache.shape[1], k_cache.shape[2]
        W = min(4096, max(256, Sk // 4))
        rep = Hq // Hkv
        q = (lambda x, *d: x.permute(*d))((x @ wq).reshape(B, Sq, Hq, Dh), 0, 2, 1, 3)
        k = (lambda x, n, axis: torch.repeat_interleave(x, n, dim=axis))(k_cache[:, :, Sk - W:, :], rep, axis=1)
        v = (lambda x, n, axis: torch.repeat_interleave(x, n, dim=axis))(v_cache[:, :, Sk - W:, :], rep, axis=1)
        scores = torch.einsum("bhqd,bhkd->bhqk", q, k) * (Dh ** -0.5)
        p = _softmax(scores, axis=-1)
        o = torch.einsum("bhqk,bhkd->bhqd", p, v)
        return (lambda x, *d: x.permute(*d))(o, 0, 2, 1, 3).reshape(B, Sq, Hq * Dh) @ wo

    def _B_ref(x, W_gate, W_up, W_down):
        gate = torch.einsum("bsd,df->bsf", x, W_gate)
        up = torch.einsum("bsd,df->bsf", x, W_up)
        gate = gate * (lambda x, dt: x.to(dt))(gate > 0, gate.dtype)
        h = gate * up
        return torch.einsum("bsf,fd->bsd", h, W_down)

    x = A_x
    h = x + _A_ref(_layernorm(x, axis=-1), A_k_cache, A_v_cache, A_wq, A_wo)
    h2 = h + _B_ref(_layernorm(h, axis=-1), B_W_gate, B_W_up, B_W_down)
    return h2
```

```python
import re

_REG = re.compile(r'\b([vsa])(\d+)\b|\b([vsa])\[(\d+):(\d+)\]|\b(vcc|exec|m0|scc)\b')

def regs_of(tok):
    out = set()
    for m in _REG.finditer(tok):
        if m.group(1):
            out.add((m.group(1), int(m.group(2))))
        elif m.group(3):
            for i in range(int(m.group(4)), int(m.group(5)) + 1):
                out.add((m.group(3), i))
        else:
            out.add((m.group(6), 0))
    return out

TRANS = ('v_exp_f32', 'v_log_f32', 'v_rcp_f32', 'v_rsq_f32', 'v_sqrt_f32', 'v_sin_f32', 'v_cos_f32')

class Ins:
    def __init__(self, text):
        self.text = text
        t = text.split(';')[0].strip()
        self.is_label = t.endswith(':')
        self.is_dir = t.startswith('.')
        self.op = ''
        self.dst = set(); self.src = set()
        if self.is_label or self.is_dir or not t:
            return
        parts = t.split(None, 1)
        self.op = op = parts[0]
        rest = parts[1] if len(parts) > 1 else ''
        ops = []; depth = 0; cur = ''
        for ch in rest:
            if ch == '[': depth += 1
            if ch == ']': depth -= 1
            if ch == ',' and depth == 0:
                ops.append(cur.strip()); cur = ''
            else:
                cur += ch
        if cur.strip(): ops.append(cur.strip())
        self.ops = ops
        self.valu = op.startswith('v_') and not op.startswith('v_mfma')
        self.mfma = op.startswith('v_mfma')
        self.salu = op.startswith('s_')
        self.vmem = op.startswith(('buffer_', 'global_'))
        self.ds = op.startswith('ds_')
        self.dpp = '_dpp' in op or ' row_' in t or 'quad_perm' in t
        self.sdwa = '_sdwa' in op
        self.lds_dma = self.vmem and (re.search(r'\blds\b', rest) is not None or '_lds_' in op)
        allr = [regs_of(o) for o in ops]
        if self.vmem:
            if 'store' in op or self.lds_dma:
                for r in allr: self.src |= r
                self.store_data = allr[0] if op.startswith('buffer_store') else (allr[1] if 'store' in op else set())
            else:
                self.dst |= allr[0]
                for r in allr[1:]: self.src |= r
        elif self.ds:
            if op.startswith(('ds_write', 'ds_add_u32', 'ds_add_f32', 'ds_max', 'ds_or')):
                for r in allr: self.src |= r
            else:
                self.dst |= allr[0]
                for r in allr[1:]: self.src |= r
        elif op.startswith('v_permlane'):
            self.dst |= allr[0] | allr[1]; self.src |= allr[0] | allr[1]
        elif op.startswith(('s_cmp', 's_cbranch', 's_branch', 's_waitcnt', 's_barrier', 's_nop', 's_endpgm', 's_sleep', 's_setprio', 's_bitcmp')):
            for r in allr: self.src |= r
        elif op.startswith(('v_add_co', 'v_addc_co', 'v_sub_co')):
            self.dst |= allr[0] | allr[1]
            for r in allr[2:]: self.src |= r
        else:
            if allr:
                self.dst |= allr[0]
                for r in allr[1:]: self.src |= r
            if op.startswith(('v_fmac', 'v_dot2c', 'v_writelane')) or self.dpp or self.sdwa:
                self.src |= allr[0]
            if op.startswith('v_cndmask') and len(ops) == 3:
                self.src.add(('vcc', 0))
            if 'saveexec' in op:
                self.dst.add(('exec', 0))
        if self.mfma:
            self.srcA = allr[1]; self.srcB = allr[2]; self.srcC = allr[3]
            self.passes = 4 if '16x16x32' in op or '16x16x16' in op else (8 if '32x32' in op else 2)

    def states(self):
        if self.op == 's_nop':
            return int(self.ops[0], 0) + 1
        return 1

def isv(rs): return {r for r in rs if r[0] in ('v', 'a')}
def iss(rs): return {r for r in rs if r[0] in ('s', 'vcc')}

def need(p, c):
    n = 0
    pv = isv(p.dst)
    if p.valu:
        if c.mfma and pv & (c.srcA | c.srcB | c.srcC): n = max(n, 2)
        if c.valu and c.dpp and pv & isv(c.src): n = max(n, 2)
        if c.op.startswith('v_permlane') and pv & isv(c.src): n = max(n, 2)
        if c.op.startswith(('v_readlane', 'v_readfirstlane')) and pv & isv(c.src): n = max(n, 1)
        ps = iss(p.dst)
        if ps:
            if c.valu and ps & iss(c.src): n = max(n, 4 if c.op.startswith(('v_readlane', 'v_writelane')) else 2)
            if c.vmem and ps & iss(c.src): n = max(n, 5)
            if c.mfma and ps & iss(c.src): n = max(n, 2)
        if p.op.replace('_e32', '').replace('_e64', '') in TRANS and (c.valu or c.mfma or c.vmem or c.ds) and pv & isv(c.src | c.dst): n = max(n, 1)
        if p.sdwa and c.valu and pv & isv(c.src | c.dst): n = max(n, 1)
        if ('exec', 0) in p.dst: n = max(n, 5)
    if p.mfma:
        tab = {2: (5, 4), 4: (8, 6), 8: (12, 10)}[p.passes]
        if c.mfma:
            if pv & (c.srcA | c.srcB): n = max(n, tab[0])
            if pv & c.srcC:
                if not (pv == c.srcC and p.passes == c.passes and p.passes >= 4): n = max(n, tab[1])
            if pv & isv(c.dst) and not (pv == c.srcC): n = max(n, tab[1])
        elif (c.valu or c.vmem or c.ds) and pv & isv(c.src | c.dst): n = max(n, tab[0])
        if c.valu and p.srcC & isv(c.dst): n = max(n, {2: 1, 4: 3, 8: 7}[p.passes])
    if p.salu and ('m0', 0) in p.dst and (c.lds_dma or 'addtid' in c.op): n = max(n, 1)
    if p.vmem and 'store' in p.op and ('x4' in p.op or 'x3' in p.op):
        if isv(p.store_data) & isv(c.dst): n = max(n, 2 if c.valu else 1)
    return n

class Asm:
    def __init__(self):
        self.lines = []
        self.uid = 0
    def __call__(self, s):
        for l in s.strip('\n').split('\n'):
            l = l.strip()
            if l: self.lines.append(l)
    def label(self, name): self.lines.append(name + ':')
    def newlabel(self, p='L'):
        self.uid += 1
        return f'{p}_{self.uid}'
    def finish(self):
        out = []; hist = []
        for l in self.lines:
            if l.startswith(';'):
                out.append('    ' + l); continue
            ins = Ins(l)
            if ins.is_label:
                out.append(l); continue
            if ins.is_dir or not ins.op:
                out.append(l); continue
            req = 0; dist = 0
            for p in reversed(hist[-24:]):
                n = need(p, ins)
                if n > dist: req = max(req, n - dist)
                dist += p.states()
                if dist > 20: break
            while req > 0:
                k = min(req, 16)
                nop = Ins(f's_nop {k-1}')
                out.append(f'    s_nop {k-1}')
                hist.append(nop); req -= k
            out.append('    ' + l)
            hist.append(ins)
            if ins.op in ('s_branch', 's_endpgm'):
                hist = []
        return '\n'.join(out) + '\n'
```

```python
import sys
from asmlib import Asm

NAME = "sequential_preLN__sliding_block_cached__glu_gated_reglu__decode"
STAMPS = '--stamps' in sys.argv

WS_EPOCH = 0
WS_QP = 0x1000
WS_ST = 0x11000
WS_PP = 0x20000
WS_Y = 0xA0000
WS_GU = 0xC0000
WS_FS = 0x130000
WS_H = 0x131000
WS_Z = 0x140000
WS_STAMP = 0x200000
WS_BYTES = 0x300000

L_K = 0x0000
L_V = 0x8000
L_W = 0x10000
L_WQ = 0x18000
L_XN = 0x1C000
L_Q = 0x1C400
L_P = 0x1C800
L_RB = 0x1D800
L_FL = 0x1E800
L_MX = 0x1E900
L_LS = 0x1E940
L_WG = 0x1E980
L_MU = 0x1EA00
LDS_BYTES = 0x1EB00
F_Q, F_C1, F_C2 = L_FL, L_FL + 4, L_FL + 8

SPIN_G = 1 << 14
SPIN_L = 1 << 16

sX, sK, sV, sWQ, sWO, sWG, sWU, sWD, sOUT, sWS = [f's[{8+4*i}:{11+4*i}]' for i in range(10)]
SRD_BASE = {'X': 8, 'K': 12, 'V': 16, 'WQ': 20, 'WO': 24, 'WG': 28, 'WU': 32, 'WD': 36, 'OUT': 40, 'WS': 44}
SRD_SIZE = {'X': 1024, 'K': 64 << 20, 'V': 64 << 20, 'WQ': 4 << 20, 'WO': 4 << 20, 'WG': 512 * 3584, 'WU': 512 * 3584,
            'WD': 1792 * 1024, 'OUT': 1024, 'WS': WS_BYTES}
SRD_ARG = {'X': 64, 'K': 66, 'V': 68, 'WQ': 70, 'WO': 72, 'WG': 76, 'WU': 78, 'WD': 80, 'OUT': 82, 'WS': 86}

LOG2E = 0x3fb8aa3b
SCALE = 0x3db504f3

a = Asm()
nstamp = [0]

def stamp(idx):
    if not STAMPS: return
    a(f's_memrealtime s[88:89]')
    a('s_waitcnt lgkmcnt(0)')
    a(f'v_writelane_b32 v127, s88, {idx}')

def stamp_flush():
    if not STAMPS: return
    a('s_mov_b64 exec, 0xffff')
    a('s_mul_i32 s88, s2, 10')
    a('s_add_u32 s88, s88, s3')
    a('s_lshl_b32 s88, s88, 6')
    a(f's_add_u32 s88, s88, {WS_STAMP}')
    a('v_lshlrev_b32 v126, 2, v0')
    a(f'buffer_store_dword v127, v126, {sWS}, s88 offen')

def allreduce(op, v, t):
    o = {'add': 'v_add_f32', 'max': 'v_max_f32'}[op]
    a(f'{o}_dpp {v}, {v}, {v} quad_perm:[1,0,3,2] row_mask:0xf bank_mask:0xf')
    a(f'{o}_dpp {v}, {v}, {v} quad_perm:[2,3,0,1] row_mask:0xf bank_mask:0xf')
    a(f'{o}_dpp {v}, {v}, {v} row_half_mirror row_mask:0xf bank_mask:0xf')
    a(f'{o}_dpp {v}, {v}, {v} row_mirror row_mask:0xf bank_mask:0xf')
    rows_reduce(op, v, t)

def rows_reduce(op, v, t):
    o = {'add': 'v_add_f32', 'max': 'v_max_f32'}[op]
    a(f'v_mov_b32 {t}, {v}')
    a(f'v_permlane16_swap_b32 {v}, {t}')
    a(f'{o} {v}, {v}, {t}')
    a(f'v_mov_b32 {t}, {v}')
    a(f'v_permlane32_swap_b32 {v}, {t}')
    a(f'{o} {v}, {v}, {t}')

def bf16r(v):
    a(f'v_cvt_pk_bf16_f32 {v}, {v}, {v}')
    a(f'v_and_b32 {v}, 0xffff0000, {v}')

def tag(v):
    a(f'v_bfi_b32 {v}, s50, {v}, v1')

def get_tags():
    a('s_add_u32 s7, s7, 1')
    a('s_and_b32 s6, s7, 0xff')
    a('v_mov_b32 v1, s6')
    a('s_mul_i32 s51, s7, 0x9E3779B1')
    a('s_xor_b32 s51, s51, 0x5bd1e995')
    a('s_mul_i32 s52, s7, 0x85EBCA77')
    a('s_xor_b32 s52, s52, 0xc2b2ae3d')

def lds_wait(addr, val, vt, va):
    L = a.newlabel('Lw'); D = a.newlabel('Lwd')
    a(f'v_mov_b32 {va}, {addr}')
    a(f's_mov_b32 s53, {SPIN_L}')
    a.label(L)
    a(f'ds_read_b32 {vt}, {va}')
    a('s_sub_u32 s53, s53, 1')
    a(f's_cbranch_scc1 {D}')
    a('s_waitcnt lgkmcnt(0)')
    a(f'v_cmp_ne_u32 vcc, {val}, {vt}')
    a(f's_cbranch_vccnz {L}')
    a.label(D)
    a('s_waitcnt lgkmcnt(0)')

def lds_signal(addr, vt, va):
    a(f'v_mov_b32 {va}, {addr}')
    a(f'v_mov_b32 {vt}, 1')
    a('s_mov_b64 exec, 1')
    a(f'ds_add_u32 {va}, {vt}')
    a('s_mov_b64 exec, -1')

def poll4(dst, voff, soff, t0, t1, execmask=None):
    L = a.newlabel('Lp'); D = a.newlabel('Lpd')
    a(f's_mov_b32 s53, {SPIN_G}')
    a.label(L)
    a(f'buffer_load_dwordx4 v[{dst}:{dst+3}], {voff}, {sWS}, {soff} offen sc1')
    a('s_sub_u32 s53, s53, 1')
    a(f's_cbranch_scc1 {D}')
    a('s_waitcnt vmcnt(0)')
    a(f'v_bitop3_b32 {t0}, v{dst}, v{dst+1}, v1 bitop3:0x7e')
    a(f'v_bitop3_b32 {t1}, v{dst+2}, v{dst+3}, v1 bitop3:0x7e')
    a(f'v_bitop3_b32 {t0}, {t0}, {t1}, s50 bitop3:0x54')
    a(f'v_cmp_ne_u32 vcc, 0, {t0}')
    for i in range(4):
        a(f'v_and_b32 v{dst+i}, s50, v{dst+i}')
    a(f's_cbranch_vccnz {L}')
    a.label(D)
    a('s_waitcnt vmcnt(0)')

def poll_rec(dst, voff, soff, t0, t1):
    L = a.newlabel('Lp'); D = a.newlabel('Lpd')
    a(f's_mov_b32 s53, {SPIN_G}')
    a.label(L)
    a(f'buffer_load_dwordx4 v[{dst}:{dst+3}], {voff}, {sWS}, {soff} offen sc1')
    a('s_sub_u32 s53, s53, 1')
    a(f's_cbranch_scc1 {D}')
    a('s_waitcnt vmcnt(0)')
    a(f'v_bitop3_b32 {t0}, v{dst}, v{dst+1}, v1 bitop3:0x7e')
    a(f'v_and_b32 {t0}, 0xff, {t0}')
    a(f'v_xor_b32 {t1}, s51, v{dst+2}')
    a(f'v_or_b32 {t0}, {t0}, {t1}')
    a(f'v_xor_b32 {t1}, s52, v{dst+3}')
    a(f'v_or_b32 {t0}, {t0}, {t1}')
    a(f'v_cmp_ne_u32 vcc, 0, {t0}')
    for i in range(2):
        a(f'v_and_b32 v{dst+i}, s50, v{dst+i}')
    a(f's_cbranch_vccnz {L}')
    a.label(D)
    a('s_waitcnt vmcnt(0)')

def reduce8(d, t):
    a(f'v_permlane32_swap_b32 v{d}, v{d+2}')
    a(f'v_permlane32_swap_b32 v{d+1}, v{d+3}')
    a(f'v_add_f32 v{d}, v{d}, v{d+2}')
    a(f'v_add_f32 v{d+1}, v{d+1}, v{d+3}')
    a(f'v_permlane16_swap_b32 v{d}, v{d+1}')
    a(f'v_add_f32 v{d}, v{d}, v{d+1}')
    a(f'v_add_f32_dpp v{d}, v{d}, v{d} row_ror:8 row_mask:0xf bank_mask:0xf')

def endwave():
    stamp_flush()
    a('s_endpgm')

a(f'''
s_cmp_ge_u32 s2, 256
s_cbranch_scc1 L_exit
s_load_dwordx16 s[64:79], s[0:1], 0
s_load_dwordx8 s[80:87], s[0:1], 64
v_lshrrev_b32 v1, 6, v0
v_and_b32 v0, 63, v0
v_readfirstlane_b32 s3, v1
s_and_b32 s4, s2, 7
s_lshr_b32 s5, s2, 3
s_mov_b32 s50, 0xffffff00
''')
if STAMPS: a('v_mov_b32 v127, 0')
for k, b in SRD_BASE.items():
    a(f's_mov_b32 s{b+2}, {SRD_SIZE[k]}')
    a(f's_mov_b32 s{b+3}, 0x00020000')
a(f'''
v_mov_b32 v2, 0
v_lshlrev_b32 v3, 2, v0
v_add_u32 v3, {L_FL}, v3
ds_write_b32 v3, v2
v_lshlrev_b32 v2, 4, v0
v_lshrrev_b32 v3, 4, v0
v_and_b32 v4, 15, v0
s_waitcnt lgkmcnt(0)
''')
for k, b in SRD_BASE.items():
    a(f's_mov_b64 s[{b}:{b+1}], s[{SRD_ARG[k]}:{SRD_ARG[k]+1}]')
a('s_load_dword s7, s[86:87], 0')
stamp(0)
a('''
s_cmp_eq_u32 s3, 0
s_cbranch_scc1 L_helper
s_cmp_lt_u32 s3, 5
s_cbranch_scc1 L_kwave
s_cmp_lt_u32 s3, 9
s_cbranch_scc1 L_vwave
''')

a.label('L_late')
a('''
v_lshrrev_b32 v5, 5, v0
v_and_b32 v6, 31, v0
v_lshlrev_b32 v7, 1, v5
v_xor_b32 v6, v6, v7
v_lshlrev_b32 v6, 4, v6
s_barrier
s_cmp_ge_u32 s5, 30
s_cbranch_scc1 L_late_end
s_cmp_ge_u32 s5, 16
s_cbranch_scc1 L_late_F
''')
a('''
v_lshlrev_b32 v7, 10, v5
v_add_u32 v8, v6, v7
v_xor_b32 v9, 64, v8
v_xor_b32 v10, 128, v8
v_xor_b32 v11, 192, v8
s_lshr_b32 s54, s5, 1
s_lshl_b32 s55, s4, 3
s_add_u32 s54, s54, s55
s_lshl_b32 s54, s54, 16
s_and_b32 s55, s5, 1
s_lshl_b32 s55, s55, 9
s_add_u32 s54, s54, s55
''')
for i in range(32):
    a(f's_mov_b32 m0, {L_W + i*1024}')
    a(f'buffer_load_dwordx4 v{8 + (i & 3)}, {sWO}, s54 offen nt lds')
    a('s_add_u32 s54, s54, 2048')
stamp(1)
a('s_barrier')
a('s_waitcnt vmcnt(0)')
stamp(2)
a('s_barrier')
a('s_cmp_ge_u32 s5, 14')
a('s_cbranch_scc1 L_late_end')
a('''
s_lshl_b32 s54, s5, 3
s_add_u32 s54, s54, s4
s_and_b32 s55, s54, 1
s_lshr_b32 s54, s54, 1
s_lshl_b32 s54, s54, 15
s_lshl_b32 s55, s55, 9
s_add_u32 s54, s54, s55
s_barrier
''')
for i in range(16):
    a(f's_mov_b32 m0, {L_WQ + i*1024}')
    a(f'buffer_load_dwordx4 v{8 + (i & 3)}, {sWD}, s54 offen nt lds')
    a('s_add_u32 s54, s54, 2048')
a('s_waitcnt vmcnt(0)')
stamp(3)
a('s_barrier')
a('s_branch L_late_end')
a.label('L_late_F')
a('''
v_mul_u32_u24 v7, 3584, v5
v_add_u32 v8, v6, v7
v_xor_b32 v9, 64, v8
v_xor_b32 v10, 128, v8
v_xor_b32 v11, 192, v8
s_sub_u32 s54, s5, 16
s_lshl_b32 s54, s54, 3
s_add_u32 s54, s54, s4
s_lshr_b32 s55, s54, 4
s_and_b32 s54, s54, 15
s_mul_i32 s54, s54, 32*3584
s_lshl_b32 s55, s55, 9
s_add_u32 s54, s54, s55
s_mov_b32 s55, s54
s_barrier
''')
for i in range(16):
    a(f's_mov_b32 m0, {L_W + i*1024}')
    a(f'buffer_load_dwordx4 v{8 + (i & 3)}, {sWG}, s54 offen nt lds')
    a('s_add_u32 s54, s54, 7168')
for i in range(16):
    a(f's_mov_b32 m0, {L_W + 16384 + i*1024}')
    a(f'buffer_load_dwordx4 v{8 + (i & 3)}, {sWU}, s55 offen nt lds')
    a('s_add_u32 s55, s55, 7168')
stamp(1)
a('s_waitcnt vmcnt(0)')
stamp(2)
a('s_barrier')
a.label('L_late_end')
endwave()

a.label('L_vwave')
a(f'''
v_lshlrev_b32 v5, 1, v3
v_xor_b32 v5, v4, v5
v_lshlrev_b32 v5, 4, v5
v_lshl_add_u32 v5, v3, 8, v5
v_xor_b32 v6, 128, v5
s_sub_u32 s54, s3, 5
s_lshl_b32 s55, s54, 13
s_add_u32 s56, s55, {L_V}
s_lshl_b32 s57, s4, 23
s_lshl_b32 s58, s5, 15
s_add_u32 s57, s57, s58
s_add_u32 s57, s57, s55
s_add_u32 s57, s57, {28672*256}
s_mov_b32 m0, s56
s_barrier
''')
for h in range(2):
    for i in range(4):
        a(f'buffer_load_dwordx4 v{5 + (i & 1)}, {sV}, s57 offen offset:{i*1024} nt lds')
    if h == 0:
        a('s_add_u32 s56, s56, 4096')
        a('s_add_u32 s57, s57, 4096')
        a('s_mov_b32 m0, s56')
stamp(1)
a('s_waitcnt lgkmcnt(0)')
get_tags()
a('s_branch L_pv')

a.label('L_kwave')
a(f'''
v_xor_b32 v5, v4, v3
v_lshlrev_b32 v5, 4, v5
v_lshl_add_u32 v5, v3, 8, v5
v_xor_b32 v6, 64, v5
v_xor_b32 v7, 128, v5
v_xor_b32 v8, 192, v5
s_sub_u32 s54, s3, 1
s_lshl_b32 s55, s54, 13
s_add_u32 s56, s55, {L_K}
s_lshl_b32 s57, s4, 23
s_lshl_b32 s58, s5, 15
s_add_u32 s57, s57, s58
s_add_u32 s57, s57, s55
s_add_u32 s57, s57, {28672*256}
s_mov_b32 m0, s56
s_barrier
''')
for h in range(2):
    for i in range(4):
        a(f'buffer_load_dwordx4 v{5 + i}, {sK}, s57 offen offset:{i*1024} nt lds')
    if h == 0:
        a('s_add_u32 s56, s56, 4096')
        a('s_add_u32 s57, s57, 4096')
        a('s_mov_b32 m0, s56')
stamp(1)
a(f'''
v_xor_b32 v5, v3, v4
v_lshlrev_b32 v5, 4, v5
v_lshl_add_u32 v5, v4, 8, v5
v_add_u32 v5, s55, v5
v_xor_b32 v6, 64, v5
v_xor_b32 v7, 128, v5
v_xor_b32 v8, 192, v5
v_and_b32 v9, 3, v0
v_lshlrev_b32 v10, 8, v9
v_lshl_add_u32 v10, v3, 4, v10
v_add_u32 v10, {L_Q}, v10
s_waitcnt lgkmcnt(0)
''')
get_tags()
a('s_waitcnt vmcnt(0)')
stamp(2)
for t in range(2):
    for kk in range(4):
        d = 16 + (t * 4 + kk) * 4
        a(f'ds_read_b128 v[{d}:{d+3}], v{5+kk} offset:{L_K + t*4096}')
lds_wait(F_Q, 1, 'v11', 'v12')
stamp(3)
for kk in range(4):
    a(f'ds_read_b128 v[{48+kk*4}:{51+kk*4}], v10 offset:{kk*64}')
a('s_waitcnt lgkmcnt(0)')
for kk in range(4):
    for t in range(2):
        d = 16 + (t * 4 + kk) * 4
        acc = f'v[{64+t*4}:{67+t*4}]'
        a(f'v_mfma_f32_16x16x32_bf16 {acc}, v[{d}:{d+3}], v[{48+kk*4}:{51+kk*4}], {acc if kk else 0}')
a(f's_mov_b32 s58, {SCALE}')
for i in range(4):
    a(f'v_cvt_pk_bf16_f32 v{72+i}, v{64+2*i}, v{65+2*i}')
for i in range(4):
    a(f'v_lshlrev_b32 v{64+2*i}, 16, v{72+i}')
    a(f'v_and_b32 v{65+2*i}, 0xffff0000, v{72+i}')
for i in range(8):
    a(f'v_mul_f32 v{64+i}, s58, v{64+i}')
for i in range(4):
    a(f'v_cvt_pk_bf16_f32 v{72+i}, v{64+2*i}, v{65+2*i}')
for i in range(4):
    a(f'v_lshlrev_b32 v{64+2*i}, 16, v{72+i}')
    a(f'v_and_b32 v{65+2*i}, 0xffff0000, v{72+i}')
a('''
v_max3_f32 v76, v64, v65, v66
v_max3_f32 v77, v67, v68, v69
v_max3_f32 v76, v76, v70, v71
v_max_f32 v76, v76, v77
''')
rows_reduce('max', 'v76', 'v77')
a(f'''
v_lshlrev_b32 v13, 4, v9
s_lshl_b32 s59, s54, 2
v_add_u32 v14, s59, v13
ds_write_b32 v14, v76 offset:0
''' .replace('offset:0', f'offset:0'))
a.lines.pop()
a(f'v_add_u32 v14, {L_MX}, v14')
a(f'v_add_u32 v13, {L_MX}, v13')
a('ds_write_b32 v14, v76')
lds_signal(F_C1, 'v11', 'v12')
lds_wait(F_C1, 4, 'v11', 'v12')
a('ds_read_b128 v[80:83], v13')
a(f's_mov_b32 s58, {LOG2E}')
a('s_waitcnt lgkmcnt(0)')
a('''
v_max3_f32 v76, v80, v81, v82
v_max_f32 v76, v76, v83
''')
for i in range(8):
    a(f'v_sub_f32 v{64+i}, v{64+i}, v76')
for i in range(8):
    a(f'v_mul_f32 v{64+i}, s58, v{64+i}')
for i in range(8):
    a(f'v_exp_f32 v{64+i}, v{64+i}')
for i in range(4):
    a(f'v_cvt_pk_bf16_f32 v{72+i}, v{64+2*i}, v{65+2*i}')
a(f'''
s_lshl_b32 s59, s54, 10
v_add_u32 v15, s59, v2
v_add_u32 v15, {L_P}, v15
ds_write_b128 v15, v[72:75]
v_add_f32 v64, v64, v65
v_add_f32 v66, v66, v67
v_add_f32 v68, v68, v69
v_add_f32 v70, v70, v71
v_add_f32 v64, v64, v66
v_add_f32 v68, v68, v70
v_add_f32 v64, v64, v68
''')
rows_reduce('add', 'v64', 'v65')
a(f'ds_write_b32 v14, v64 offset:{L_LS - L_MX}')
lds_signal(F_C2, 'v11', 'v12')
stamp(4)
a('s_cmp_lg_u32 s3, 1')
a('s_cbranch_scc1 L_pv')
lds_wait(F_C2, 4, 'v11', 'v12')
a(f'ds_read_b128 v[80:83], v13 offset:{L_LS - L_MX}')
a(f'''
v_lshlrev_b32 v15, 9, v9
s_lshl_b32 s59, s4, 11
s_lshl_b32 s60, s5, 4
s_add_u32 s59, s59, s60
s_add_u32 s59, s59, {WS_ST}
v_mov_b32 v86, s51
v_mov_b32 v87, s52
v_mov_b32 v84, v76
s_waitcnt lgkmcnt(0)
v_add_f32 v80, v80, v81
v_add_f32 v82, v82, v83
v_add_f32 v85, v80, v82
''')
tag('v84'); tag('v85')
a('s_mov_b64 exec, 0xf')
a(f'buffer_store_dwordx4 v[84:87], v15, {sWS}, s59 offen sc1')
a('s_mov_b64 exec, -1')

a.label('L_pv')
a(f'''
s_sub_u32 s54, s3, 1
v_lshrrev_b32 v5, 2, v0
v_and_b32 v6, 7, v5
v_xor_b32 v7, s54, v6
v_lshlrev_b32 v7, 5, v7
v_lshl_add_u32 v7, v5, 8, v7
v_and_b32 v8, 3, v0
v_lshl_add_u32 v7, v8, 3, v7
v_add_u32 v9, {L_P}, v2
''')
a(f'''
v_lshlrev_b32 v10, 9, v4
v_lshl_add_u32 v10, v3, 4, v10
s_lshl_b32 s55, s4, 16
s_lshl_b32 s56, s5, 11
s_add_u32 s55, s55, s56
s_lshl_b32 s56, s54, 6
s_add_u32 s55, s55, s56
s_add_u32 s55, s55, {WS_PP}
''')
lds_wait(F_C2, 4, 'v11', 'v12')
for t in range(4):
    a(f'ds_read_b128 v[{16+4*t}:{19+4*t}], v9 offset:{t*1024}')
a('s_cmp_lt_u32 s3, 5')
a('s_cbranch_scc1 L_pv_nowait')
a('s_waitcnt vmcnt(0)')
a.label('L_pv_nowait')
stamp(5)
a('s_barrier')
for t in range(4):
    for hh in range(2):
        d = 32 + t * 4 + hh * 2
        a(f'ds_read_b64_tr_b16 v[{d}:{d+1}], v7 offset:{L_V + t*8192 + hh*4096}')
for t in range(4):
    a(f's_waitcnt lgkmcnt({6 - 2*t})')
    a(f'v_mfma_f32_16x16x32_bf16 v[48:51], v[{32+4*t}:{35+4*t}], v[{16+4*t}:{19+4*t}], {"v[48:51]" if t else 0}')
for i in range(4): tag(f'v{48+i}')
a('s_mov_b32 s56, 0x000f000f')
a('s_mov_b32 s57, 0x000f000f')
a('s_mov_b64 exec, s[56:57]')
a(f'buffer_store_dwordx4 v[48:51], v10, {sWS}, s55 offen sc1')
a('s_mov_b64 exec, -1')
stamp(6)
a('''
s_cmp_ge_u32 s5, 30
s_cbranch_scc1 L_fin
s_cmp_ge_u32 s5, 16
s_cbranch_scc1 L_fstage
''')

a.label('L_ostage')
a(f'''
s_lshl_b32 s56, s54, 1
v_xor_b32 v7, s56, v6
v_lshlrev_b32 v7, 5, v7
v_lshl_add_u32 v7, v5, 9, v7
v_lshl_add_u32 v7, v8, 3, v7
v_add_u32 v13, {L_W}, v7
v_xor_b32 v14, 32, v13
''')
a(f'''
v_lshlrev_b32 v10, 11, v3
v_lshl_add_u32 v10, v4, 4, v10
s_lshl_b32 s55, s4, 16
s_lshl_b32 s56, s54, 13
s_add_u32 s55, s55, s56
s_lshr_b32 s56, s5, 1
s_lshl_b32 s56, s56, 8
s_add_u32 s55, s55, s56
s_add_u32 s55, s55, {WS_PP}
''')
a(f'''
s_lshl_b32 s56, s54, 4
v_lshl_add_u32 v15, v3, 2, s56
v_add_u32 v15, {L_WG}, v15
v_lshrrev_b32 v52, 3, v4
v_lshlrev_b32 v52, 6, v52
v_and_b32 v53, 3, v4
v_lshl_add_u32 v52, v53, 4, v52
v_bfe_u32 v53, v4, 2, 1
v_lshl_add_u32 v52, v53, 3, v52
v_lshrrev_b32 v53, 5, v0
v_lshl_add_u32 v52, v53, 2, v52
v_and_b32 v53, 1, v3
v_mul_u32_u24 v53, 144, v53
v_add_u32 v52, v52, v53
s_mul_i32 s56, s54, 288
s_add_u32 s56, s56, {L_RB}
v_add_u32 v52, s56, v52
v_mul_u32_u24 v53, 144, v4
v_lshl_add_u32 v53, v3, 4, v53
v_add_u32 v53, {L_RB}, v53
''')
a(f'''
v_lshrrev_b32 v54, 5, v0
v_lshlrev_b32 v54, 6, v54
v_lshl_add_u32 v54, v4, 2, v54
s_and_b32 s56, s5, 1
s_lshl_b32 s56, s56, 3
s_add_u32 s56, s56, s54
s_lshl_b32 s56, s56, 6
s_lshl_b32 s57, s4, 3
s_add_u32 s56, s56, s57
s_lshr_b32 s57, s5, 1
s_add_u32 s56, s56, s57
s_lshl_b32 s56, s56, 7
s_add_u32 s56, s56, {WS_Y}
s_barrier
''')
stamp(7)
for e in range(2):
    for t in range(2):
        for hh in range(2):
            d = 16 + e * 8 + t * 4 + hh * 2
            a(f'ds_read_b64_tr_b16 v[{d}:{d+1}], v{13+e} offset:{t*16384 + hh*8192}')
a('ds_read_b32 v55, v15')
poll4(32, 'v10', 's55', 'v56', 'v57')
stamp(8)
a('s_waitcnt lgkmcnt(0)')
for i in range(4):
    a(f'v_mul_f32 v{32+i}, v55, v{32+i}')
a('''
v_permlane32_swap_b32 v32, v34
v_permlane32_swap_b32 v33, v35
v_add_f32 v32, v32, v34
v_add_f32 v33, v33, v35
v_cvt_pk_bf16_f32 v32, v32, v33
ds_write_b32 v52, v32
s_waitcnt lgkmcnt(0)
s_barrier
ds_read_b128 v[36:39], v53
ds_read_b128 v[40:43], v53 offset:64
s_waitcnt lgkmcnt(1)
v_mfma_f32_16x16x32_bf16 v[44:47], v[36:39], v[16:19], 0
v_mfma_f32_16x16x32_bf16 v[48:51], v[36:39], v[24:27], 0
s_waitcnt lgkmcnt(0)
v_mfma_f32_16x16x32_bf16 v[44:47], v[40:43], v[20:23], v[44:47]
v_mfma_f32_16x16x32_bf16 v[48:51], v[40:43], v[28:31], v[48:51]
v_add_f32 v44, v44, v45
v_add_f32 v46, v46, v47
v_add_f32 v44, v44, v46
v_add_f32 v48, v48, v49
v_add_f32 v50, v50, v51
v_add_f32 v48, v48, v50
v_permlane32_swap_b32 v44, v48
v_add_f32 v44, v44, v48
v_mov_b32 v45, v44
v_permlane16_swap_b32 v44, v45
v_add_f32 v44, v44, v45
''')
tag('v44')
a('s_mov_b32 s58, 0x0000ffff')
a('s_mov_b32 s59, 0x0000ffff')
a('s_mov_b64 exec, s[58:59]')
a(f'buffer_store_dword v44, v54, {sWS}, s56 offen sc1')
a('s_mov_b64 exec, -1')
stamp(9)
a('s_cmp_ge_u32 s5, 14')
a('s_cbranch_scc1 L_wend')

a.label('L_dstage')
a(f'''
v_add_u32 v13, {L_WQ}, v7
v_xor_b32 v14, 32, v13
s_lshl_b32 s60, s5, 3
s_add_u32 s60, s60, s4
s_and_b32 s61, s60, 1
s_lshr_b32 s60, s60, 1
s_lshl_b32 s55, s60, 13
s_lshl_b32 s56, s54, 10
s_add_u32 s55, s55, s56
s_add_u32 s55, s55, {WS_GU}
''')
a(f'''
s_lshl_b32 s56, s54, 9
s_add_u32 s56, s56, {L_RB}
v_lshl_add_u32 v52, v0, 3, s56
v_lshrrev_b32 v53, 3, v4
v_lshlrev_b32 v53, 5, v53
v_bfe_u32 v55, v4, 2, 1
v_lshl_add_u32 v53, v55, 4, v53
v_lshl_add_u32 v53, v3, 2, v53
v_and_b32 v55, 3, v4
v_add_u32 v53, v53, v55
v_lshlrev_b32 v53, 3, v53
v_add_u32 v53, {L_RB}, v53
v_mov_b32 v15, {L_MU}
''')
a(f'''
v_and_b32 v55, 1, v4
v_lshlrev_b32 v55, 4, v55
v_mov_b32 v56, 0xffff
v_lshlrev_b32 v56, v55, v56
v_lshrrev_b32 v55, 1, v4
''')
for i in range(8):
    a(f'v_cmp_eq_u32 vcc, {i}, v55')
    a(f'v_cndmask_b32 v{64+i}, 0, v56, vcc')
a(f'''
s_lshl_b32 s56, s61, 3
s_add_u32 s56, s56, s54
s_mul_i32 s56, s56, 56
s_add_u32 s56, s56, s60
s_lshl_b32 s56, s56, 7
s_add_u32 s56, s56, {WS_Z}
s_barrier
''')
stamp(10)
for e in range(2):
    for hh in range(2):
        d = 16 + e * 4 + hh * 2
        a(f'ds_read_b64_tr_b16 v[{d}:{d+1}], v{13+e} offset:{hh*8192}')
poll4(32, 'v2', 's55', 'v56', 'v57')
stamp(11)
a('''
v_permlane32_swap_b32 v32, v33
v_permlane32_swap_b32 v34, v35
v_add_f32 v32, v32, v33
v_add_f32 v33, v34, v35
ds_write_b64 v52, v[32:33]
s_waitcnt lgkmcnt(0)
s_barrier
ds_read2st64_b64 v[36:39], v53 offset0:0 offset1:1
ds_read2st64_b64 v[40:43], v53 offset0:2 offset1:3
ds_read2st64_b64 v[44:47], v53 offset0:4 offset1:5
ds_read2st64_b64 v[48:51], v53 offset0:6 offset1:7
ds_read_b64 v[58:59], v15
s_waitcnt lgkmcnt(0)
v_pk_add_f32 v[36:37], v[36:37], v[38:39]
v_pk_add_f32 v[40:41], v[40:41], v[42:43]
v_pk_add_f32 v[44:45], v[44:45], v[46:47]
v_pk_add_f32 v[48:49], v[48:49], v[50:51]
v_pk_add_f32 v[36:37], v[36:37], v[40:41]
v_pk_add_f32 v[44:45], v[44:45], v[48:49]
v_pk_add_f32 v[36:37], v[36:37], v[44:45]
v_fma_f32 v36, -v58, v37, v36
v_mul_f32 v36, v36, v59
''')
bf16r('v36')
a('''
v_mov_b32_dpp v37, v36 row_ror:8 row_mask:0xf bank_mask:0xf
v_cmp_gt_u32 vcc, 8, v4
v_cndmask_b32 v38, v37, v36, vcc
v_mul_f32 v36, v36, v37
v_cmp_lt_f32 vcc, 0, v38
v_cndmask_b32 v36, 0, v36, vcc
v_cvt_pk_bf16_f32 v36, v36, v36
''')
for i in range(8):
    a(f'v_and_b32 v{40+i}, v36, v{64+i}')
a('''
v_mfma_f32_16x16x32_bf16 v[48:51], v[40:43], v[16:19], 0
v_mfma_f32_16x16x32_bf16 v[48:51], v[44:47], v[20:23], v[48:51]
v_add_f32 v48, v48, v49
v_add_f32 v50, v50, v51
v_add_f32 v44, v48, v50
v_mov_b32 v45, v44
v_permlane16_swap_b32 v44, v45
v_add_f32 v44, v44, v45
''')
tag('v44')
a('s_mov_b64 exec, s[58:59]')
a(f'buffer_store_dword v44, v54, {sWS}, s56 offen sc1')
a('s_mov_b64 exec, -1')
stamp(12)
a.label('L_wend')
endwave()

def rf_addrs():
    a(f'''
    v_and_b32 v52, 7, v0
    v_lshlrev_b32 v52, 4, v52
    v_lshl_add_u32 v52, v3, 2, v52
    s_lshl_b32 s56, s54, 7
    s_add_u32 s56, s56, {L_RB}
    v_add_u32 v52, s56, v52
    ''')

a.label('L_fstage')
a(f'''
s_sub_u32 s60, s5, 16
s_lshl_b32 s60, s60, 3
s_add_u32 s60, s60, s4
s_lshr_b32 s61, s60, 4
s_and_b32 s60, s60, 15
''')
a(f'''
v_lshrrev_b32 v53, 1, v8
v_lshlrev_b32 v53, 4, v53
v_lshl_add_u32 v53, v3, 2, v53
v_and_b32 v55, 1, v0
v_lshl_add_u32 v53, v55, 1, v53
v_lshlrev_b32 v55, 1, v53
s_lshl_b32 s56, s60, 6
buffer_load_dword v60, v55, {sX}, s56 offen
v_lshlrev_b32 v53, 2, v53
v_add_u32 v53, {L_RB}, v53
s_lshl_b32 s56, s54, 1
v_xor_b32 v7, s56, v6
v_lshlrev_b32 v7, 5, v7
v_lshl_add_u32 v7, v5, 9, v7
v_lshl_add_u32 v7, v8, 3, v7
v_add_u32 v13, {L_W}, v7
v_xor_b32 v14, 32, v13
s_lshl_b32 s55, s60, 13
s_lshl_b32 s56, s54, 10
s_add_u32 s55, s55, s56
s_add_u32 s55, s55, {WS_Y}
''')
rf_addrs()
for i in range(4):
    a(f'v_cmp_eq_u32 vcc, {i}, v4')
    a(f'v_cndmask_b32 v{64+i}, 0, -1, vcc')
    a(f'v_cmp_eq_u32 vcc, {8+i}, v4')
    a(f'v_cndmask_b32 v{68+i}, 0, -1, vcc')
a(f'''
v_mov_b32 v74, 0x3f803f80
v_cmp_eq_u32 vcc, 4, v4
v_cndmask_b32 v72, 0, v74, vcc
v_cmp_eq_u32 vcc, 12, v4
v_cndmask_b32 v73, 0, v74, vcc
''')
a(f'''
v_lshrrev_b32 v54, 1, v3
v_lshlrev_b32 v54, 8, v54
v_lshl_add_u32 v54, v4, 4, v54
v_and_b32 v55, 1, v3
v_lshl_add_u32 v54, v55, 3, v54
s_lshl_b32 s56, s61, 3
s_add_u32 s56, s56, s54
s_lshl_b32 s56, s56, 4
s_add_u32 s56, s56, s60
s_lshl_b32 s56, s56, 9
s_add_u32 s56, s56, {WS_GU}
s_waitcnt vmcnt(0)
v_lshlrev_b32 v61, 16, v60
v_and_b32 v62, 0xffff0000, v60
s_barrier
''')
stamp(7)
for mtx in range(2):
    for e in range(2):
        for hh in range(2):
            d = 16 + mtx * 8 + e * 4 + hh * 2
            a(f'ds_read_b64_tr_b16 v[{d}:{d+1}], v{13+e} offset:{mtx*16384 + hh*8192}')
poll4(32, 'v2', 's55', 'v56', 'v57')
stamp(8)
reduce8(32, 'v36')
a('''
ds_write_b32 v52, v32
s_waitcnt lgkmcnt(0)
s_barrier
ds_read2_b64 v[36:39], v53 offset0:0 offset1:16
ds_read2_b64 v[40:43], v53 offset0:32 offset1:48
ds_read2_b64 v[44:47], v53 offset0:64 offset1:80
ds_read2_b64 v[48:51], v53 offset0:96 offset1:112
s_waitcnt lgkmcnt(0)
v_pk_add_f32 v[36:37], v[36:37], v[38:39]
v_pk_add_f32 v[40:41], v[40:41], v[42:43]
v_pk_add_f32 v[44:45], v[44:45], v[46:47]
v_pk_add_f32 v[48:49], v[48:49], v[50:51]
v_pk_add_f32 v[36:37], v[36:37], v[40:41]
v_pk_add_f32 v[44:45], v[44:45], v[48:49]
v_pk_add_f32 v[36:37], v[36:37], v[44:45]
v_cvt_pk_bf16_f32 v38, v36, v37
v_lshlrev_b32 v36, 16, v38
v_and_b32 v37, 0xffff0000, v38
v_add_f32 v36, v36, v61
v_add_f32 v37, v37, v62
v_cvt_pk_bf16_f32 v38, v36, v37
''')
for i in range(4):
    a(f'v_and_or_b32 v{40+i}, v38, v{64+i}, v72')
for i in range(4):
    a(f'v_and_or_b32 v{44+i}, v38, v{68+i}, v73')
a('''
v_mfma_f32_16x16x32_bf16 v[48:51], v[40:43], v[16:19], 0
v_mfma_f32_16x16x32_bf16 v[76:79], v[40:43], v[24:27], 0
v_mfma_f32_16x16x32_bf16 v[48:51], v[44:47], v[20:23], v[48:51]
v_mfma_f32_16x16x32_bf16 v[76:79], v[44:47], v[28:31], v[76:79]
v_add_f32 v48, v48, v49
v_add_f32 v50, v50, v51
v_add_f32 v58, v48, v50
v_add_f32 v76, v76, v77
v_add_f32 v78, v78, v79
v_add_f32 v59, v76, v78
''')
tag('v58'); tag('v59')
a(f'buffer_store_dwordx2 v[58:59], v54, {sWS}, s56 offen sc1')
stamp(9)
endwave()

a.label('L_fin')
a(f'''
s_cmp_eq_u32 s54, 7
s_cbranch_scc1 L_wend2
s_sub_u32 s60, s5, 30
s_lshl_b32 s61, s4, 1
s_add_u32 s60, s60, s61
s_mul_i32 s55, s60, 7168
s_lshl_b32 s56, s54, 10
s_add_u32 s55, s55, s56
s_add_u32 s55, s55, {WS_Z}
''')
rf_addrs()
poll4(32, 'v2', 's55', 'v56', 'v57')
stamp(8)
reduce8(32, 'v36')
a('''
ds_write_b32 v52, v32
s_waitcnt lgkmcnt(0)
s_barrier
''')
a.label('L_wend2')
endwave()

a.label('L_helper')
a(f'''
buffer_load_dwordx4 v[8:11], v2, {sX}, 0 offen
v_lshlrev_b32 v5, 1, v3
v_and_b32 v6, 7, v0
v_xor_b32 v5, v5, v6
v_lshlrev_b32 v5, 4, v5
v_lshrrev_b32 v6, 3, v0
v_lshl_add_u32 v5, v6, 13, v5
s_lshr_b32 s60, s5, 3
s_and_b32 s61, s5, 7
s_lshl_b32 s54, s60, 20
s_lshl_b32 s55, s4, 10
s_add_u32 s54, s54, s55
s_lshl_b32 s55, s61, 7
s_add_u32 s54, s54, s55
''')
for i in range(16):
    a(f's_mov_b32 m0, {L_WQ + i*1024}')
    a(f'buffer_load_dwordx4 v5, {sWQ}, s54 offen nt lds')
    a('s_add_u32 s54, s54, 65536')
a('s_barrier')
stamp(1)
a(f'''
v_lshrrev_b32 v5, 2, v0
v_bfe_u32 v6, v0, 3, 2
v_lshlrev_b32 v6, 5, v6
v_lshl_add_u32 v6, v5, 7, v6
v_and_b32 v7, 3, v0
v_lshl_add_u32 v6, v7, 3, v6
v_add_u32 v120, {L_WQ}, v6
v_xor_b32 v121, 32, v120
v_xor_b32 v122, 64, v120
v_xor_b32 v123, 96, v120
s_lshl_b32 s55, s60, 8
s_add_u32 s55, s55, {L_XN}
v_lshl_add_u32 v124, v3, 3, s55
v_add_u32 v125, {L_XN}, v2
s_waitcnt vmcnt(16)
''')
stamp(2)
for i in range(4):
    a(f'v_lshlrev_b32 v{12+2*i}, 16, v{8+i}')
    a(f'v_and_b32 v{13+2*i}, 0xffff0000, v{8+i}')
a('''
v_add_f32 v20, v12, v13
v_add_f32 v21, v14, v15
v_add_f32 v22, v16, v17
v_add_f32 v23, v18, v19
v_add_f32 v20, v20, v21
v_add_f32 v22, v22, v23
v_add_f32 v20, v20, v22
''')
allreduce('add', 'v20', 'v21')
a('v_mul_f32 v20, 0x3b000000, v20')
for i in range(8):
    a(f'v_sub_f32 v{24+i}, v{12+i}, v20')
a('v_mul_f32 v21, v24, v24')
for i in range(1, 8):
    a(f'v_fmac_f32 v21, v{24+i}, v{24+i}')
allreduce('add', 'v21', 'v22')
a('v_mul_f32 v21, 0x3b000000, v21')
bf16r('v20'); bf16r('v21')
a('v_add_f32 v21, 0x3727c5ac, v21')
bf16r('v21')
a('v_sqrt_f32 v21, v21')
bf16r('v21')
a('v_rcp_f32 v21, v21')
for i in range(8):
    a(f'v_sub_f32 v{24+i}, v{12+i}, v20')
for i in range(4):
    a(f'v_cvt_pk_bf16_f32 v{8+i}, v{24+2*i}, v{25+2*i}')
for i in range(4):
    a(f'v_lshlrev_b32 v{24+2*i}, 16, v{8+i}')
    a(f'v_and_b32 v{25+2*i}, 0xffff0000, v{8+i}')
for i in range(8):
    a(f'v_mul_f32 v{24+i}, v{24+i}, v21')
for i in range(4):
    a(f'v_cvt_pk_bf16_f32 v{8+i}, v{24+2*i}, v{25+2*i}')
a('ds_write_b128 v125, v[8:11]')
for t in range(4):
    a(f'ds_read2_b64 v[{12+4*t}:{15+4*t}], v124 offset0:{8*t} offset1:{8*t+4}')
a('s_waitcnt lgkmcnt(0)')
get_tags()
a(f'''
v_lshlrev_b32 v7, 2, v0
s_lshl_b32 s54, s4, 13
s_lshl_b32 s55, s60, 11
s_add_u32 s55, s55, s54
s_lshl_b32 s56, s61, 8
s_add_u32 s55, s55, s56
s_add_u32 s55, s55, {WS_QP}
s_add_u32 s54, s54, {WS_QP}
s_add_u32 s56, s54, 4096
''')
stamp(3)
for t in range(4):
    a(f's_waitcnt vmcnt({12 - 4*t})')
    for ct in range(4):
        for hh in range(2):
            d = 32 + (t * 4 + ct) * 4 + hh * 2
            a(f'ds_read_b64_tr_b16 v[{d}:{d+1}], v{120+ct} offset:{t*4096 + hh*2048}')
    if t > 0:
        tt = t - 1
        a('s_waitcnt lgkmcnt(8)')
        for ct in range(4):
            d = 32 + (tt * 4 + ct) * 4
            acc = f'v[{96+4*ct}:{99+4*ct}]'
            a(f'v_mfma_f32_16x16x32_bf16 {acc}, v[{12+4*tt}:{15+4*tt}], v[{d}:{d+3}], {acc if tt else 0}')
for ct in range(4):
    a(f's_waitcnt lgkmcnt({6 - 2*ct})')
    d = 32 + (12 + ct) * 4
    acc = f'v[{96+4*ct}:{99+4*ct}]'
    a(f'v_mfma_f32_16x16x32_bf16 {acc}, v[24:27], v[{d}:{d+3}], {acc}')
stamp(4)
a('''
v_cmp_eq_u32 vcc, 1, v3
v_cndmask_b32 v96, v96, v100, vcc
v_cmp_eq_u32 vcc, 2, v3
v_cndmask_b32 v96, v96, v104, vcc
v_cmp_eq_u32 vcc, 3, v3
v_cndmask_b32 v96, v96, v108, vcc
''')
tag('v96')
a(f'buffer_store_dword v96, v7, {sWS}, s55 offen sc1')
stamp(5)
L = a.newlabel('Lq'); D = a.newlabel('Lqd')
a(f's_mov_b32 s53, {SPIN_G}')
a.label(L)
for i in range(8):
    a(f'buffer_load_dwordx4 v[{32+4*i}:{35+4*i}], v2, {sWS}, {"s54" if i < 4 else "s56"} offen offset:{(i & 3)*1024} sc1')
a('s_sub_u32 s53, s53, 1')
a(f's_cbranch_scc1 {D}')
a('v_mov_b32 v8, 0')
for i in range(8):
    a(f's_waitcnt vmcnt({7-i})')
    a(f'v_bitop3_b32 v9, v{32+4*i}, v{33+4*i}, v1 bitop3:0x7e')
    a(f'v_bitop3_b32 v10, v{34+4*i}, v{35+4*i}, v1 bitop3:0x7e')
    a('v_or3_b32 v8, v8, v9, v10')
    for c in range(4):
        a(f'v_and_b32 v{32+4*i+c}, s50, v{32+4*i+c}')
a('v_and_b32 v8, 0xff, v8')
a('v_cmp_ne_u32 vcc, 0, v8')
a(f's_cbranch_vccnz {L}')
a.label(D)
a('s_waitcnt vmcnt(0)')
stamp(6)
for h in range(2):
    for c in (0, 2):
        r = lambda k: f'v[{32+4*(2*k+h)+c}:{33+4*(2*k+h)+c}]'
        a(f'v_pk_add_f32 {r(0)}, {r(0)}, {r(1)}')
        a(f'v_pk_add_f32 {r(2)}, {r(2)}, {r(3)}')
        a(f'v_pk_add_f32 {r(0)}, {r(0)}, {r(2)}')
a(f'''
v_cvt_pk_bf16_f32 v8, v32, v33
v_cvt_pk_bf16_f32 v9, v34, v35
v_cvt_pk_bf16_f32 v10, v36, v37
v_cvt_pk_bf16_f32 v11, v38, v39
v_lshlrev_b32 v12, 3, v0
v_add_u32 v12, {L_Q}, v12
ds_write_b64 v12, v[8:9]
ds_write_b64 v12, v[10:11] offset:512
''')
lds_signal(F_Q, 'v13', 'v14')
stamp(7)
a('''
s_waitcnt lgkmcnt(0)
s_barrier
s_cmp_ge_u32 s5, 30
s_cbranch_scc1 L_hfin
s_cmp_ge_u32 s5, 16
s_cbranch_scc1 L_hf
''')
a(f'''
v_and_b32 v5, 31, v0
v_lshlrev_b32 v6, 4, v5
s_lshl_b32 s54, s4, 11
s_lshr_b32 s55, s5, 2
s_lshl_b32 s55, s55, 9
s_add_u32 s54, s54, s55
s_add_u32 s54, s54, {WS_ST}
''')
poll_rec(8, 'v6', 's54', 'v12', 'v13')
stamp(8)
a(f'''
v_mov_b32 v14, v8
''')
allreduce('max', 'v14', 'v15')
a(f'''
s_mov_b32 s58, {LOG2E}
v_sub_f32 v8, v8, v14
v_mul_f32 v8, s58, v8
v_exp_f32 v8, v8
v_mul_f32 v9, v8, v9
''')
allreduce('add', 'v9', 'v15')
a(f'''
v_mul_f32 v9, 0.5, v9
v_rcp_f32 v9, v9
v_lshlrev_b32 v6, 2, v5
v_add_u32 v6, {L_WG}, v6
v_mul_f32 v8, v8, v9
ds_write_b32 v6, v8
s_waitcnt lgkmcnt(0)
s_barrier
s_cmp_ge_u32 s5, 14
s_cbranch_scc1 L_hend
s_barrier
s_barrier
''')
a(f'''
v_lshlrev_b32 v6, 4, v4
s_mov_b32 s54, {WS_FS}
''')
poll_rec(8, 'v6', 's54', 'v12', 'v13')
stamp(9)
for v in ('v8', 'v9'):
    a(f'v_add_f32_dpp {v}, {v}, {v} quad_perm:[1,0,3,2] row_mask:0xf bank_mask:0xf')
    a(f'v_add_f32_dpp {v}, {v}, {v} quad_perm:[2,3,0,1] row_mask:0xf bank_mask:0xf')
    a(f'v_add_f32_dpp {v}, {v}, {v} row_half_mirror row_mask:0xf bank_mask:0xf')
    a(f'v_add_f32_dpp {v}, {v}, {v} row_mirror row_mask:0xf bank_mask:0xf')
a('''
v_mul_f32 v8, 0x3b000000, v8
v_mul_f32 v9, 0x3b000000, v9
v_fma_f32 v9, -v8, v8, v9
v_max_f32 v9, 0, v9
''')
bf16r('v8'); bf16r('v9')
a('v_add_f32 v9, 0x3727c5ac, v9')
bf16r('v9')
a('v_sqrt_f32 v9, v9')
bf16r('v9')
a('v_rcp_f32 v9, v9')
a(f'''
v_mov_b32 v6, {L_MU}
ds_write_b64 v6, v[8:9]
s_waitcnt lgkmcnt(0)
s_barrier
''')
a.label('L_hend')
endwave()

a.label('L_hf')
a(f'''
s_sub_u32 s60, s5, 16
s_lshl_b32 s60, s60, 3
s_add_u32 s60, s60, s4
s_cmp_ge_u32 s60, 16
s_cbranch_scc1 L_hend2
v_and_b32 v5, 31, v0
v_lshlrev_b32 v6, 1, v5
s_lshl_b32 s54, s60, 6
buffer_load_ushort v20, v6, {sX}, s54 offen
v_lshlrev_b32 v6, 2, v5
v_add_u32 v7, {L_RB}, v6
s_lshl_b32 s54, s60, 7
s_add_u32 s54, s54, {WS_H}
s_lshl_b32 s55, s60, 4
s_add_u32 s55, s55, {WS_FS}
v_mov_b32 v26, s51
v_mov_b32 v27, s52
v_mov_b32 v28, 0
s_waitcnt vmcnt(0)
v_lshlrev_b32 v20, 16, v20
s_barrier
s_barrier
''')
for i in range(4):
    a(f'ds_read2_b32 v[{8+2*i}:{9+2*i}], v7 offset0:{64*i} offset1:{64*i+32}')
a('''
s_waitcnt lgkmcnt(0)
v_add_f32 v8, v8, v9
v_add_f32 v10, v10, v11
v_add_f32 v12, v12, v13
v_add_f32 v14, v14, v15
v_add_f32 v8, v8, v10
v_add_f32 v12, v12, v14
v_add_f32 v8, v8, v12
''')
bf16r('v8')
a('v_add_f32 v8, v8, v20')
bf16r('v8')
a('''
v_mov_b32 v24, v8
v_mul_f32 v25, v8, v8
''')
for v in ('v24', 'v25'):
    a(f'v_add_f32_dpp {v}, {v}, {v} quad_perm:[1,0,3,2] row_mask:0xf bank_mask:0xf')
    a(f'v_add_f32_dpp {v}, {v}, {v} quad_perm:[2,3,0,1] row_mask:0xf bank_mask:0xf')
    a(f'v_add_f32_dpp {v}, {v}, {v} row_half_mirror row_mask:0xf bank_mask:0xf')
    a(f'v_add_f32_dpp {v}, {v}, {v} row_mirror row_mask:0xf bank_mask:0xf')
a('''
v_mov_b32 v9, v24
v_mov_b32 v10, v25
v_permlane16_swap_b32 v24, v9
v_permlane16_swap_b32 v25, v10
v_add_f32 v24, v24, v9
v_add_f32 v25, v25, v10
''')
tag('v24'); tag('v25'); tag('v8')
a('s_mov_b64 exec, 1')
a(f'buffer_store_dwordx4 v[24:27], v28, {sWS}, s55 offen sc1')
a('s_mov_b32 s56, -1')
a('s_mov_b32 s57, 0')
a('s_mov_b64 exec, s[56:57]')
a(f'buffer_store_dword v8, v6, {sWS}, s54 offen sc1')
a('s_mov_b64 exec, -1')
stamp(9)
a.label('L_hend2')
endwave()

a.label('L_hfin')
a(f'''
s_sub_u32 s60, s5, 30
s_lshl_b32 s61, s4, 1
s_add_u32 s60, s60, s61
v_and_b32 v5, 31, v0
v_lshlrev_b32 v6, 2, v5
v_add_u32 v7, {L_RB}, v6
s_lshl_b32 s54, s60, 7
s_add_u32 s54, s54, {WS_H}
''')
L = a.newlabel('Lh'); D = a.newlabel('Lhd')
a(f's_mov_b32 s53, {SPIN_G}')
a.label(L)
a(f'buffer_load_dword v20, v6, {sWS}, s54 offen sc1')
a('s_sub_u32 s53, s53, 1')
a(f's_cbranch_scc1 {D}')
a('s_waitcnt vmcnt(0)')
a('v_xor_b32 v21, v20, v1')
a('v_and_b32 v21, 0xff, v21')
a('v_cmp_ne_u32 vcc, 0, v21')
a(f's_cbranch_vccnz {L}')
a.label(D)
a(f'''
s_waitcnt vmcnt(0)
v_and_b32 v20, s50, v20
v_lshlrev_b32 v6, 1, v5
s_lshl_b32 s54, s60, 6
v_mov_b32 v22, s7
v_mov_b32 v23, 0
s_barrier
''')
stamp(8)
for i in range(3):
    a(f'ds_read2_b32 v[{8+2*i}:{9+2*i}], v7 offset0:{64*i} offset1:{64*i+32}')
a('ds_read_b32 v14, v7 offset:768')
a('''
s_waitcnt lgkmcnt(0)
v_add_f32 v8, v8, v9
v_add_f32 v10, v10, v11
v_add_f32 v12, v12, v13
v_add_f32 v8, v8, v10
v_add_f32 v12, v12, v14
v_add_f32 v8, v8, v12
''')
bf16r('v8')
a('v_add_f32 v8, v8, v20')
a('v_cvt_pk_bf16_f32 v8, v8, v8')
a('s_mov_b32 s56, -1')
a('s_mov_b32 s57, 0')
a('s_mov_b64 exec, s[56:57]')
a(f'buffer_store_short v8, v6, {sOUT}, s54 offen')
a('s_cmp_lg_u32 s60, 0')
a('s_cbranch_scc1 L_hend3')
a('s_mov_b64 exec, 1')
a(f'buffer_store_dword v22, v23, {sWS}, 0 offen')
a.label('L_hend3')
a('s_mov_b64 exec, -1')
stamp(9)
endwave()
a.label('L_exit')
a('s_endpgm')

body = a.finish()
hdr = open(f'cdna_kernels/{NAME}.s.ref').read().split('\n')
comments = [l for l in hdr if l.startswith(';') and '@launch' not in l]
out = '\n'.join(comments) + f'\n; @launch grid=(256,1,1) block=(640,1,1) lds={LDS_BYTES}\n'
out += f'''.amdgcn_target "amdgcn-amd-amdhsa--gfx950"
.text
.globl {NAME}_kernel
.p2align 8
.type {NAME}_kernel,@function
{NAME}_kernel:
{body}
.section .rodata,"a"
.p2align 6
.amdhsa_kernel {NAME}_kernel
  .amdhsa_next_free_vgpr 128
  .amdhsa_next_free_sgpr 96
  .amdhsa_accum_offset 128
  .amdhsa_group_segment_fixed_size 0
  .amdhsa_kernarg_size 96
  .amdhsa_user_sgpr_count 2
  .amdhsa_user_sgpr_kernarg_segment_ptr 1
  .amdhsa_system_sgpr_workgroup_id_x 1
.end_amdhsa_kernel
'''
dst = [x for x in sys.argv[1:] if not x.startswith('--')]
open(dst[0] if dst else f'cdna_kernels/{NAME}.s', 'w').write(out)
```

```python
import sys
from asmlib import Asm

NAME = "sequential_preLN__sliding_block_cached__glu_gated_reglu__decode"
STAMPS = '--stamps' in sys.argv
DBGT = '--dbgt' in sys.argv

WS_EPOCH = 0
WS_QP = 0x1000
WS_ST = 0x11000
WS_PP = 0x20000
WS_Y = 0xA0000
WS_GU = 0xC0000
WS_FS = 0x130000
WS_H = 0x131000
WS_Z = 0x140000
WS_STAMP = 0x200000
WS_BYTES = 0x300000

L_K = 0x0000
L_V = 0x8000
L_W = 0x10000
L_WQ = 0x18000
L_XN = 0x1C000
L_Q = 0x1C400
L_P = 0x1C800
L_RB = 0x1D800
L_FL = 0x1E800
L_MX = 0x1E900
L_LS = 0x1E940
L_WG = 0x1E980
L_MU = 0x1EA00
LDS_BYTES = 0x1EB00
F_Q, F_C1, F_C2 = L_FL, L_FL + 4, L_FL + 8

SPIN_G = 1 << 14
SPIN_L = 1 << 16

sX, sK, sV, sWQ, sWO, sWG, sWU, sWD, sOUT, sWS = [f's[{8+4*i}:{11+4*i}]' for i in range(10)]
SRD_BASE = {'X': 8, 'K': 12, 'V': 16, 'WQ': 20, 'WO': 24, 'WG': 28, 'WU': 32, 'WD': 36, 'OUT': 40, 'WS': 44}
SRD_SIZE = {'X': 1024, 'K': 64 << 20, 'V': 64 << 20, 'WQ': 4 << 20, 'WO': 4 << 20, 'WG': 512 * 3584, 'WU': 512 * 3584,
            'WD': 1792 * 1024, 'OUT': 1024, 'WS': WS_BYTES}
SRD_ARG = {'X': 64, 'K': 66, 'V': 68, 'WQ': 70, 'WO': 72, 'WG': 76, 'WU': 78, 'WD': 80, 'OUT': 82, 'WS': 86}

LOG2E = 0x3fb8aa3b
SCALE = 0x3db504f3

a = Asm()
nstamp = [0]

def stamp(idx):
    if not STAMPS: return
    a(f's_memrealtime s[{64+2*idx}:{65+2*idx}]')

def stamp_flush():
    if not STAMPS: return
    a('s_waitcnt lgkmcnt(0)')
    a('s_mov_b64 exec, -1')
    a('v_mov_b32 v127, 0')
    for i in range(13):
        a(f'v_writelane_b32 v127, s{64+2*i}, {i}')
    a('s_mov_b64 exec, 0xffff')
    a('s_mul_i32 s92, s2, 10')
    a('s_add_u32 s92, s92, s3')
    a('s_lshl_b32 s92, s92, 6')
    a(f's_add_u32 s92, s92, {WS_STAMP}')
    a('v_lshlrev_b32 v126, 2, v0')
    a(f'buffer_store_dword v127, v126, {sWS}, s92 offen')

def allreduce(op, v, t):
    o = {'add': 'v_add_f32', 'max': 'v_max_f32'}[op]
    a(f'{o}_dpp {v}, {v}, {v} quad_perm:[1,0,3,2] row_mask:0xf bank_mask:0xf')
    a(f'{o}_dpp {v}, {v}, {v} quad_perm:[2,3,0,1] row_mask:0xf bank_mask:0xf')
    a(f'{o}_dpp {v}, {v}, {v} row_half_mirror row_mask:0xf bank_mask:0xf')
    a(f'{o}_dpp {v}, {v}, {v} row_mirror row_mask:0xf bank_mask:0xf')
    rows_reduce(op, v, t)

def rows_reduce(op, v, t):
    o = {'add': 'v_add_f32', 'max': 'v_max_f32'}[op]
    a(f'v_mov_b32 {t}, {v}')
    a(f'v_permlane16_swap_b32 {v}, {t}')
    a(f'{o} {v}, {v}, {t}')
    a(f'v_mov_b32 {t}, {v}')
    a(f'v_permlane32_swap_b32 {v}, {t}')
    a(f'{o} {v}, {v}, {t}')

def bf16r(v):
    a(f'v_cvt_pk_bf16_f32 {v}, {v}, {v}')
    a(f'v_and_b32 {v}, 0xffff0000, {v}')

def tag(v):
    a(f'v_bfi_b32 {v}, s50, {v}, v1')

def get_tags():
    a('s_add_u32 s7, s7, 1')
    a('s_and_b32 s6, s7, 0xff')
    a('v_mov_b32 v1, s6')
    a('s_mul_i32 s51, s7, 0x9E3779B1')
    a('s_xor_b32 s51, s51, 0x5bd1e995')
    a('s_mul_i32 s52, s7, 0x85EBCA77')
    a('s_xor_b32 s52, s52, 0xc2b2ae3d')

def lds_wait(addr, val, vt, va):
    L = a.newlabel('Lw'); D = a.newlabel('Lwd')
    a(f'v_mov_b32 {va}, {addr}')
    a(f's_mov_b32 s53, {SPIN_L}')
    a.label(L)
    a(f'ds_read_b32 {vt}, {va}')
    a('s_sub_u32 s53, s53, 1')
    a(f's_cbranch_scc1 {D}')
    a('s_waitcnt lgkmcnt(0)')
    a(f'v_cmp_ne_u32 vcc, {val}, {vt}')
    a(f's_cbranch_vccnz {L}')
    a.label(D)
    a('s_waitcnt lgkmcnt(0)')

def lds_signal(addr, vt, va):
    a(f'v_mov_b32 {va}, {addr}')
    a(f'v_mov_b32 {vt}, 1')
    a('s_mov_b64 exec, 1')
    a(f'ds_add_u32 {va}, {vt}')
    a('s_mov_b64 exec, -1')

def poll4(dst, voff, soff, t0, t1, execmask=None):
    L = a.newlabel('Lp'); D = a.newlabel('Lpd')
    a(f's_mov_b32 s53, {SPIN_G}')
    a.label(L)
    a(f'buffer_load_dwordx4 v[{dst}:{dst+3}], {voff}, {sWS}, {soff} offen sc1')
    a('s_sub_u32 s53, s53, 1')
    a(f's_cbranch_scc1 {D}')
    a('s_waitcnt vmcnt(0)')
    a(f'v_bitop3_b32 {t0}, v{dst}, v{dst+1}, v1 bitop3:0x7e')
    a(f'v_bitop3_b32 {t1}, v{dst+2}, v{dst+3}, v1 bitop3:0x7e')
    a(f'v_bitop3_b32 {t0}, {t0}, {t1}, s50 bitop3:0x54')
    a(f'v_cmp_ne_u32 vcc, 0, {t0}')
    for i in range(4):
        a(f'v_and_b32 v{dst+i}, s50, v{dst+i}')
    a(f's_cbranch_vccnz {L}')
    a.label(D)
    a('s_waitcnt vmcnt(0)')

def poll_rec(dst, voff, soff, t0, t1):
    L = a.newlabel('Lp'); D = a.newlabel('Lpd')
    a(f's_mov_b32 s53, {SPIN_G}')
    a.label(L)
    a(f'buffer_load_dwordx4 v[{dst}:{dst+3}], {voff}, {sWS}, {soff} offen sc1')
    a('s_sub_u32 s53, s53, 1')
    a(f's_cbranch_scc1 {D}')
    a('s_waitcnt vmcnt(0)')
    a(f'v_bitop3_b32 {t0}, v{dst}, v{dst+1}, v1 bitop3:0x7e')
    a(f'v_and_b32 {t0}, 0xff, {t0}')
    a(f'v_xor_b32 {t1}, s51, v{dst+2}')
    a(f'v_or_b32 {t0}, {t0}, {t1}')
    a(f'v_xor_b32 {t1}, s52, v{dst+3}')
    a(f'v_or_b32 {t0}, {t0}, {t1}')
    a(f'v_cmp_ne_u32 vcc, 0, {t0}')
    for i in range(2):
        a(f'v_and_b32 v{dst+i}, s50, v{dst+i}')
    a(f's_cbranch_vccnz {L}')
    a.label(D)
    a('s_waitcnt vmcnt(0)')

def reduce8(d, t):
    a(f'v_permlane32_swap_b32 v{d}, v{d+2}')
    a(f'v_permlane32_swap_b32 v{d+1}, v{d+3}')
    a(f'v_add_f32 v{d}, v{d}, v{d+2}')
    a(f'v_add_f32 v{d+1}, v{d+1}, v{d+3}')
    a(f'v_permlane16_swap_b32 v{d}, v{d+1}')
    a(f'v_add_f32 v{d}, v{d}, v{d+1}')
    a(f'v_add_f32_dpp v{d}, v{d}, v{d} row_ror:8 row_mask:0xf bank_mask:0xf')

def endwave():
    stamp_flush()
    a('s_endpgm')

a(f'''
s_cmp_ge_u32 s2, 256
s_cbranch_scc1 L_exit
s_load_dwordx16 s[64:79], s[0:1], 0
s_load_dwordx8 s[80:87], s[0:1], 64
v_lshrrev_b32 v1, 6, v0
v_and_b32 v0, 63, v0
v_readfirstlane_b32 s3, v1
s_and_b32 s4, s2, 7
s_lshr_b32 s5, s2, 3
s_mov_b32 s50, 0xffffff00
''')
for k, b in SRD_BASE.items():
    a(f's_mov_b32 s{b+2}, {SRD_SIZE[k]}')
    a(f's_mov_b32 s{b+3}, 0x00020000')
a(f'''
v_mov_b32 v2, 0
v_lshlrev_b32 v3, 2, v0
v_add_u32 v3, {L_FL}, v3
ds_write_b32 v3, v2
v_lshlrev_b32 v2, 4, v0
v_lshrrev_b32 v3, 4, v0
v_and_b32 v4, 15, v0
s_waitcnt lgkmcnt(0)
''')
for k, b in SRD_BASE.items():
    a(f's_mov_b64 s[{b}:{b+1}], s[{SRD_ARG[k]}:{SRD_ARG[k]+1}]')
a('s_load_dword s7, s[44:45], 0')
if DBGT:
    a('s_mov_b64 s[92:93], s[84:85]')
    a('s_mov_b32 s94, 256')
    a('s_mov_b32 s95, 0x00020000')
    a('s_memrealtime s[90:91]')
if STAMPS:
    for i in range(1, 13): a(f's_mov_b32 s{64+2*i}, 0')
stamp(0)
a('''
s_cmp_eq_u32 s3, 0
s_cbranch_scc1 L_helper
s_cmp_lt_u32 s3, 5
s_cbranch_scc1 L_kwave
s_cmp_lt_u32 s3, 9
s_cbranch_scc1 L_vwave
''')

a.label('L_late')
a('''
v_lshrrev_b32 v5, 5, v0
v_and_b32 v6, 31, v0
v_lshlrev_b32 v7, 1, v5
v_xor_b32 v6, v6, v7
v_lshlrev_b32 v6, 4, v6
s_barrier
s_cmp_ge_u32 s5, 30
s_cbranch_scc1 L_late_end
s_cmp_ge_u32 s5, 16
s_cbranch_scc1 L_late_F
''')
a('''
v_lshlrev_b32 v7, 10, v5
v_add_u32 v8, v6, v7
v_xor_b32 v9, 64, v8
v_xor_b32 v10, 128, v8
v_xor_b32 v11, 192, v8
s_lshr_b32 s54, s5, 1
s_lshl_b32 s55, s4, 3
s_add_u32 s54, s54, s55
s_lshl_b32 s54, s54, 16
s_and_b32 s55, s5, 1
s_lshl_b32 s55, s55, 9
s_add_u32 s54, s54, s55
''')
for i in range(32):
    a(f's_mov_b32 m0, {L_W + i*1024}')
    a(f'buffer_load_dwordx4 v{8 + (i & 3)}, {sWO}, s54 offen nt lds')
    a('s_add_u32 s54, s54, 2048')
stamp(1)
a('s_barrier')
a('s_waitcnt vmcnt(0)')
stamp(2)
a('s_barrier')
a('s_cmp_ge_u32 s5, 14')
a('s_cbranch_scc1 L_late_end')
a('''
s_lshl_b32 s54, s5, 3
s_add_u32 s54, s54, s4
s_and_b32 s55, s54, 1
s_lshr_b32 s54, s54, 1
s_lshl_b32 s54, s54, 15
s_lshl_b32 s55, s55, 9
s_add_u32 s54, s54, s55
s_barrier
''')
for i in range(16):
    a(f's_mov_b32 m0, {L_WQ + i*1024}')
    a(f'buffer_load_dwordx4 v{8 + (i & 3)}, {sWD}, s54 offen nt lds')
    a('s_add_u32 s54, s54, 2048')
a('s_waitcnt vmcnt(0)')
stamp(3)
a('s_barrier')
a('s_branch L_late_end')
a.label('L_late_F')
a('''
v_mul_u32_u24 v7, 3584, v5
v_add_u32 v8, v6, v7
v_xor_b32 v9, 64, v8
v_xor_b32 v10, 128, v8
v_xor_b32 v11, 192, v8
s_sub_u32 s54, s5, 16
s_lshl_b32 s54, s54, 3
s_add_u32 s54, s54, s4
s_lshr_b32 s55, s54, 4
s_and_b32 s54, s54, 15
s_mul_i32 s54, s54, 32*3584
s_lshl_b32 s55, s55, 9
s_add_u32 s54, s54, s55
s_mov_b32 s55, s54
s_barrier
''')
for i in range(16):
    a(f's_mov_b32 m0, {L_W + i*1024}')
    a(f'buffer_load_dwordx4 v{8 + (i & 3)}, {sWG}, s54 offen nt lds')
    a('s_add_u32 s54, s54, 7168')
for i in range(16):
    a(f's_mov_b32 m0, {L_W + 16384 + i*1024}')
    a(f'buffer_load_dwordx4 v{8 + (i & 3)}, {sWU}, s55 offen nt lds')
    a('s_add_u32 s55, s55, 7168')
stamp(1)
a('s_waitcnt vmcnt(0)')
stamp(2)
a('s_barrier')
a.label('L_late_end')
endwave()

a.label('L_vwave')
a(f'''
v_lshlrev_b32 v5, 1, v3
v_xor_b32 v5, v4, v5
v_lshlrev_b32 v5, 4, v5
v_lshl_add_u32 v5, v3, 8, v5
v_xor_b32 v6, 128, v5
s_sub_u32 s54, s3, 5
s_lshl_b32 s55, s54, 13
s_add_u32 s56, s55, {L_V}
s_lshl_b32 s57, s4, 23
s_lshl_b32 s58, s5, 15
s_add_u32 s57, s57, s58
s_add_u32 s57, s57, s55
s_add_u32 s57, s57, {28672*256}
s_mov_b32 m0, s56
s_barrier
''')
for h in range(2):
    for i in range(4):
        a(f'buffer_load_dwordx4 v{5 + (i & 1)}, {sV}, s57 offen offset:{i*1024} nt lds')
    if h == 0:
        a('s_add_u32 s56, s56, 4096')
        a('s_add_u32 s57, s57, 4096')
        a('s_mov_b32 m0, s56')
stamp(1)
a('s_waitcnt lgkmcnt(0)')
get_tags()
a('s_branch L_pv')

a.label('L_kwave')
a(f'''
v_xor_b32 v5, v4, v3
v_lshlrev_b32 v5, 4, v5
v_lshl_add_u32 v5, v3, 8, v5
v_xor_b32 v6, 64, v5
v_xor_b32 v7, 128, v5
v_xor_b32 v8, 192, v5
s_sub_u32 s54, s3, 1
s_lshl_b32 s55, s54, 13
s_add_u32 s56, s55, {L_K}
s_lshl_b32 s57, s4, 23
s_lshl_b32 s58, s5, 15
s_add_u32 s57, s57, s58
s_add_u32 s57, s57, s55
s_add_u32 s57, s57, {28672*256}
s_mov_b32 m0, s56
s_barrier
''')
for h in range(2):
    for i in range(4):
        a(f'buffer_load_dwordx4 v{5 + i}, {sK}, s57 offen offset:{i*1024} nt lds')
    if h == 0:
        a('s_add_u32 s56, s56, 4096')
        a('s_add_u32 s57, s57, 4096')
        a('s_mov_b32 m0, s56')
stamp(1)
a(f'''
v_xor_b32 v5, v3, v4
v_lshlrev_b32 v5, 4, v5
v_lshl_add_u32 v5, v4, 8, v5
v_add_u32 v5, s55, v5
v_xor_b32 v6, 64, v5
v_xor_b32 v7, 128, v5
v_xor_b32 v8, 192, v5
v_and_b32 v9, 3, v0
v_lshlrev_b32 v10, 8, v9
v_lshl_add_u32 v10, v3, 4, v10
v_add_u32 v10, {L_Q}, v10
s_waitcnt lgkmcnt(0)
''')
get_tags()
a('s_waitcnt vmcnt(0)')
stamp(2)
for t in range(2):
    for kk in range(4):
        d = 16 + (t * 4 + kk) * 4
        a(f'ds_read_b128 v[{d}:{d+3}], v{5+kk} offset:{L_K + t*4096}')
lds_wait(F_Q, 1, 'v11', 'v12')
stamp(3)
for kk in range(4):
    a(f'ds_read_b128 v[{48+kk*4}:{51+kk*4}], v10 offset:{kk*64}')
a('s_waitcnt lgkmcnt(0)')
for kk in range(4):
    for t in range(2):
        d = 16 + (t * 4 + kk) * 4
        acc = f'v[{64+t*4}:{67+t*4}]'
        a(f'v_mfma_f32_16x16x32_bf16 {acc}, v[{d}:{d+3}], v[{48+kk*4}:{51+kk*4}], {acc if kk else 0}')
a(f's_mov_b32 s58, {SCALE}')
for i in range(4):
    a(f'v_cvt_pk_bf16_f32 v{72+i}, v{64+2*i}, v{65+2*i}')
for i in range(4):
    a(f'v_lshlrev_b32 v{64+2*i}, 16, v{72+i}')
    a(f'v_and_b32 v{65+2*i}, 0xffff0000, v{72+i}')
for i in range(8):
    a(f'v_mul_f32 v{64+i}, s58, v{64+i}')
for i in range(4):
    a(f'v_cvt_pk_bf16_f32 v{72+i}, v{64+2*i}, v{65+2*i}')
for i in range(4):
    a(f'v_lshlrev_b32 v{64+2*i}, 16, v{72+i}')
    a(f'v_and_b32 v{65+2*i}, 0xffff0000, v{72+i}')
a('''
v_max3_f32 v76, v64, v65, v66
v_max3_f32 v77, v67, v68, v69
v_max3_f32 v76, v76, v70, v71
v_max_f32 v76, v76, v77
''')
rows_reduce('max', 'v76', 'v77')
a(f'''
v_lshlrev_b32 v13, 4, v9
s_lshl_b32 s59, s54, 2
v_add_u32 v14, s59, v13
ds_write_b32 v14, v76 offset:0
''' .replace('offset:0', f'offset:0'))
a.lines.pop()
a(f'v_add_u32 v14, {L_MX}, v14')
a(f'v_add_u32 v13, {L_MX}, v13')
a('ds_write_b32 v14, v76')
lds_signal(F_C1, 'v11', 'v12')
lds_wait(F_C1, 4, 'v11', 'v12')
a('ds_read_b128 v[80:83], v13')
a(f's_mov_b32 s58, {LOG2E}')
a('s_waitcnt lgkmcnt(0)')
a('''
v_max3_f32 v76, v80, v81, v82
v_max_f32 v76, v76, v83
''')
for i in range(8):
    a(f'v_sub_f32 v{64+i}, v{64+i}, v76')
for i in range(8):
    a(f'v_mul_f32 v{64+i}, s58, v{64+i}')
for i in range(8):
    a(f'v_exp_f32 v{64+i}, v{64+i}')
for i in range(4):
    a(f'v_cvt_pk_bf16_f32 v{72+i}, v{64+2*i}, v{65+2*i}')
a(f'''
s_lshl_b32 s59, s54, 10
v_add_u32 v15, s59, v2
v_add_u32 v15, {L_P}, v15
ds_write_b128 v15, v[72:75]
v_add_f32 v64, v64, v65
v_add_f32 v66, v66, v67
v_add_f32 v68, v68, v69
v_add_f32 v70, v70, v71
v_add_f32 v64, v64, v66
v_add_f32 v68, v68, v70
v_add_f32 v64, v64, v68
''')
rows_reduce('add', 'v64', 'v65')
a(f'ds_write_b32 v14, v64 offset:{L_LS - L_MX}')
lds_signal(F_C2, 'v11', 'v12')
stamp(4)
a('s_cmp_lg_u32 s3, 1')
a('s_cbranch_scc1 L_pv')
lds_wait(F_C2, 4, 'v11', 'v12')
a(f'ds_read_b128 v[80:83], v13 offset:{L_LS - L_MX}')
a(f'''
v_lshlrev_b32 v15, 9, v9
s_lshl_b32 s59, s4, 11
s_lshl_b32 s60, s5, 4
s_add_u32 s59, s59, s60
s_add_u32 s59, s59, {WS_ST}
v_mov_b32 v86, s51
v_mov_b32 v87, s52
v_mov_b32 v84, v76
s_waitcnt lgkmcnt(0)
v_add_f32 v80, v80, v81
v_add_f32 v82, v82, v83
v_add_f32 v85, v80, v82
''')
tag('v84'); tag('v85')
a('s_mov_b64 exec, 0xf')
a(f'buffer_store_dwordx4 v[84:87], v15, {sWS}, s59 offen sc1')
a('s_mov_b64 exec, -1')

a.label('L_pv')
a(f'''
s_sub_u32 s54, s3, 1
v_lshrrev_b32 v5, 2, v0
v_and_b32 v6, 7, v5
v_xor_b32 v7, s54, v6
v_lshlrev_b32 v7, 5, v7
v_lshl_add_u32 v7, v5, 8, v7
v_and_b32 v8, 3, v0
v_lshl_add_u32 v7, v8, 3, v7
v_add_u32 v9, {L_P}, v2
''')
a(f'''
v_lshlrev_b32 v10, 9, v4
v_lshl_add_u32 v10, v3, 4, v10
s_lshl_b32 s55, s4, 16
s_lshl_b32 s56, s5, 11
s_add_u32 s55, s55, s56
s_lshl_b32 s56, s54, 6
s_add_u32 s55, s55, s56
s_add_u32 s55, s55, {WS_PP}
''')
lds_wait(F_C2, 4, 'v11', 'v12')
for t in range(4):
    a(f'ds_read_b128 v[{16+4*t}:{19+4*t}], v9 offset:{t*1024}')
a('s_cmp_lt_u32 s3, 5')
a('s_cbranch_scc1 L_pv_nowait')
a('s_waitcnt vmcnt(0)')
a.label('L_pv_nowait')
stamp(5)
a('s_barrier')
for t in range(4):
    for hh in range(2):
        d = 32 + t * 4 + hh * 2
        a(f'ds_read_b64_tr_b16 v[{d}:{d+1}], v7 offset:{L_V + t*8192 + hh*4096}')
for t in range(4):
    a(f's_waitcnt lgkmcnt({6 - 2*t})')
    a(f'v_mfma_f32_16x16x32_bf16 v[48:51], v[{32+4*t}:{35+4*t}], v[{16+4*t}:{19+4*t}], {"v[48:51]" if t else 0}')
for i in range(4): tag(f'v{48+i}')
a('s_mov_b32 s56, 0x000f000f')
a('s_mov_b32 s57, 0x000f000f')
a('s_mov_b64 exec, s[56:57]')
a(f'buffer_store_dwordx4 v[48:51], v10, {sWS}, s55 offen sc1')
a('s_mov_b64 exec, -1')
stamp(6)
a('''
s_cmp_ge_u32 s5, 30
s_cbranch_scc1 L_fin
s_cmp_ge_u32 s5, 16
s_cbranch_scc1 L_fstage
''')

a.label('L_ostage')
a(f'''
s_lshl_b32 s56, s54, 1
v_xor_b32 v7, s56, v6
v_lshlrev_b32 v7, 5, v7
v_lshl_add_u32 v7, v5, 9, v7
v_lshl_add_u32 v7, v8, 3, v7
v_add_u32 v13, {L_W}, v7
v_xor_b32 v14, 32, v13
''')
a(f'''
v_lshlrev_b32 v10, 11, v3
v_lshl_add_u32 v10, v4, 4, v10
s_lshl_b32 s55, s4, 16
s_lshl_b32 s56, s54, 13
s_add_u32 s55, s55, s56
s_lshr_b32 s56, s5, 1
s_lshl_b32 s56, s56, 8
s_add_u32 s55, s55, s56
s_add_u32 s55, s55, {WS_PP}
''')
a(f'''
s_lshl_b32 s56, s54, 4
v_lshl_add_u32 v15, v3, 2, s56
v_add_u32 v15, {L_WG}, v15
v_lshrrev_b32 v52, 3, v4
v_lshlrev_b32 v52, 6, v52
v_and_b32 v53, 3, v4
v_lshl_add_u32 v52, v53, 4, v52
v_bfe_u32 v53, v4, 2, 1
v_lshl_add_u32 v52, v53, 3, v52
v_lshrrev_b32 v53, 5, v0
v_lshl_add_u32 v52, v53, 2, v52
v_and_b32 v53, 1, v3
v_mul_u32_u24 v53, 144, v53
v_add_u32 v52, v52, v53
s_mul_i32 s56, s54, 288
s_add_u32 s56, s56, {L_RB}
v_add_u32 v52, s56, v52
v_mul_u32_u24 v53, 144, v4
v_lshl_add_u32 v53, v3, 4, v53
v_add_u32 v53, {L_RB}, v53
''')
a(f'''
v_lshrrev_b32 v54, 5, v0
v_lshlrev_b32 v54, 6, v54
v_lshl_add_u32 v54, v4, 2, v54
s_and_b32 s56, s5, 1
s_lshl_b32 s56, s56, 3
s_add_u32 s56, s56, s54
s_lshl_b32 s56, s56, 6
s_lshl_b32 s57, s4, 3
s_add_u32 s56, s56, s57
s_lshr_b32 s57, s5, 1
s_add_u32 s56, s56, s57
s_lshl_b32 s56, s56, 7
s_add_u32 s56, s56, {WS_Y}
s_barrier
''')
stamp(7)
for e in range(2):
    for t in range(2):
        for hh in range(2):
            d = 16 + e * 8 + t * 4 + hh * 2
            a(f'ds_read_b64_tr_b16 v[{d}:{d+1}], v{13+e} offset:{t*16384 + hh*8192}')
a('ds_read_b32 v55, v15')
poll4(32, 'v10', 's55', 'v56', 'v57')
stamp(8)
a('s_waitcnt lgkmcnt(0)')
for i in range(4):
    a(f'v_mul_f32 v{32+i}, v55, v{32+i}')
a('''
v_permlane32_swap_b32 v32, v34
v_permlane32_swap_b32 v33, v35
v_add_f32 v32, v32, v34
v_add_f32 v33, v33, v35
v_cvt_pk_bf16_f32 v32, v32, v33
ds_write_b32 v52, v32
s_waitcnt lgkmcnt(0)
s_barrier
ds_read_b128 v[36:39], v53
ds_read_b128 v[40:43], v53 offset:64
s_waitcnt lgkmcnt(1)
v_mfma_f32_16x16x32_bf16 v[44:47], v[36:39], v[16:19], 0
v_mfma_f32_16x16x32_bf16 v[48:51], v[36:39], v[24:27], 0
s_waitcnt lgkmcnt(0)
v_mfma_f32_16x16x32_bf16 v[44:47], v[40:43], v[20:23], v[44:47]
v_mfma_f32_16x16x32_bf16 v[48:51], v[40:43], v[28:31], v[48:51]
v_add_f32 v44, v44, v45
v_add_f32 v46, v46, v47
v_add_f32 v44, v44, v46
v_add_f32 v48, v48, v49
v_add_f32 v50, v50, v51
v_add_f32 v48, v48, v50
v_permlane32_swap_b32 v44, v48
v_add_f32 v44, v44, v48
v_mov_b32 v45, v44
v_permlane16_swap_b32 v44, v45
v_add_f32 v44, v44, v45
''')
tag('v44')
a('s_mov_b32 s58, 0x0000ffff')
a('s_mov_b32 s59, 0x0000ffff')
a('s_mov_b64 exec, s[58:59]')
a(f'buffer_store_dword v44, v54, {sWS}, s56 offen sc1')
a('s_mov_b64 exec, -1')
stamp(9)
a('s_cmp_ge_u32 s5, 14')
a('s_cbranch_scc1 L_wend')

a.label('L_dstage')
a(f'''
v_add_u32 v13, {L_WQ}, v7
v_xor_b32 v14, 32, v13
s_lshl_b32 s60, s5, 3
s_add_u32 s60, s60, s4
s_and_b32 s61, s60, 1
s_lshr_b32 s60, s60, 1
s_lshl_b32 s55, s60, 13
s_lshl_b32 s56, s54, 10
s_add_u32 s55, s55, s56
s_add_u32 s55, s55, {WS_GU}
''')
a(f'''
s_lshl_b32 s56, s54, 9
s_add_u32 s56, s56, {L_RB}
v_lshl_add_u32 v52, v0, 3, s56
v_lshrrev_b32 v53, 3, v4
v_lshlrev_b32 v53, 5, v53
v_bfe_u32 v55, v4, 2, 1
v_lshl_add_u32 v53, v55, 4, v53
v_lshl_add_u32 v53, v3, 2, v53
v_and_b32 v55, 3, v4
v_add_u32 v53, v53, v55
v_lshlrev_b32 v53, 3, v53
v_add_u32 v53, {L_RB}, v53
v_mov_b32 v15, {L_MU}
''')
a(f'''
v_and_b32 v55, 1, v4
v_lshlrev_b32 v55, 4, v55
v_mov_b32 v56, 0xffff
v_lshlrev_b32 v56, v55, v56
v_lshrrev_b32 v55, 1, v4
''')
for i in range(8):
    a(f'v_cmp_eq_u32 vcc, {i}, v55')
    a(f'v_cndmask_b32 v{64+i}, 0, v56, vcc')
a(f'''
s_lshl_b32 s56, s61, 3
s_add_u32 s56, s56, s54
s_mul_i32 s56, s56, 56
s_add_u32 s56, s56, s60
s_lshl_b32 s56, s56, 7
s_add_u32 s56, s56, {WS_Z}
s_barrier
''')
stamp(10)
for e in range(2):
    for hh in range(2):
        d = 16 + e * 4 + hh * 2
        a(f'ds_read_b64_tr_b16 v[{d}:{d+1}], v{13+e} offset:{hh*8192}')
poll4(32, 'v2', 's55', 'v56', 'v57')
stamp(11)
a('''
v_permlane32_swap_b32 v32, v33
v_permlane32_swap_b32 v34, v35
v_add_f32 v32, v32, v33
v_add_f32 v33, v34, v35
ds_write_b64 v52, v[32:33]
s_waitcnt lgkmcnt(0)
s_barrier
ds_read2st64_b64 v[36:39], v53 offset0:0 offset1:1
ds_read2st64_b64 v[40:43], v53 offset0:2 offset1:3
ds_read2st64_b64 v[44:47], v53 offset0:4 offset1:5
ds_read2st64_b64 v[48:51], v53 offset0:6 offset1:7
ds_read_b64 v[58:59], v15
s_waitcnt lgkmcnt(0)
v_pk_add_f32 v[36:37], v[36:37], v[38:39]
v_pk_add_f32 v[40:41], v[40:41], v[42:43]
v_pk_add_f32 v[44:45], v[44:45], v[46:47]
v_pk_add_f32 v[48:49], v[48:49], v[50:51]
v_pk_add_f32 v[36:37], v[36:37], v[40:41]
v_pk_add_f32 v[44:45], v[44:45], v[48:49]
v_pk_add_f32 v[36:37], v[36:37], v[44:45]
v_fma_f32 v36, -v58, v37, v36
v_mul_f32 v36, v36, v59
''')
bf16r('v36')
a('''
v_mov_b32_dpp v37, v36 row_ror:8 row_mask:0xf bank_mask:0xf
v_cmp_gt_u32 vcc, 8, v4
v_cndmask_b32 v38, v37, v36, vcc
v_mul_f32 v36, v36, v37
v_cmp_lt_f32 vcc, 0, v38
v_cndmask_b32 v36, 0, v36, vcc
v_cvt_pk_bf16_f32 v36, v36, v36
''')
for i in range(8):
    a(f'v_and_b32 v{40+i}, v36, v{64+i}')
a('''
v_mfma_f32_16x16x32_bf16 v[48:51], v[40:43], v[16:19], 0
v_mfma_f32_16x16x32_bf16 v[48:51], v[44:47], v[20:23], v[48:51]
v_add_f32 v48, v48, v49
v_add_f32 v50, v50, v51
v_add_f32 v44, v48, v50
v_mov_b32 v45, v44
v_permlane16_swap_b32 v44, v45
v_add_f32 v44, v44, v45
''')
tag('v44')
a('s_mov_b64 exec, s[58:59]')
a(f'buffer_store_dword v44, v54, {sWS}, s56 offen sc1')
a('s_mov_b64 exec, -1')
stamp(12)
a.label('L_wend')
endwave()

def rf_addrs():
    a(f'''
    v_and_b32 v52, 7, v0
    v_lshlrev_b32 v52, 4, v52
    v_lshl_add_u32 v52, v3, 2, v52
    s_lshl_b32 s56, s54, 7
    s_add_u32 s56, s56, {L_RB}
    v_add_u32 v52, s56, v52
    ''')

a.label('L_fstage')
a(f'''
s_sub_u32 s60, s5, 16
s_lshl_b32 s60, s60, 3
s_add_u32 s60, s60, s4
s_lshr_b32 s61, s60, 4
s_and_b32 s60, s60, 15
''')
a(f'''
v_lshrrev_b32 v53, 1, v8
v_lshlrev_b32 v53, 4, v53
v_lshl_add_u32 v53, v3, 2, v53
v_and_b32 v55, 1, v0
v_lshl_add_u32 v53, v55, 1, v53
v_lshlrev_b32 v55, 1, v53
s_lshl_b32 s56, s60, 6
buffer_load_dword v60, v55, {sX}, s56 offen
v_lshlrev_b32 v53, 2, v53
v_add_u32 v53, {L_RB}, v53
s_lshl_b32 s56, s54, 1
v_xor_b32 v7, s56, v6
v_lshlrev_b32 v7, 5, v7
v_lshl_add_u32 v7, v5, 9, v7
v_lshl_add_u32 v7, v8, 3, v7
v_add_u32 v13, {L_W}, v7
v_xor_b32 v14, 32, v13
s_lshl_b32 s55, s60, 13
s_lshl_b32 s56, s54, 10
s_add_u32 s55, s55, s56
s_add_u32 s55, s55, {WS_Y}
''')
rf_addrs()
for i in range(4):
    a(f'v_cmp_eq_u32 vcc, {i}, v4')
    a(f'v_cndmask_b32 v{64+i}, 0, -1, vcc')
    a(f'v_cmp_eq_u32 vcc, {8+i}, v4')
    a(f'v_cndmask_b32 v{68+i}, 0, -1, vcc')
a(f'''
v_mov_b32 v74, 0x3f803f80
v_cmp_eq_u32 vcc, 4, v4
v_cndmask_b32 v72, 0, v74, vcc
v_cmp_eq_u32 vcc, 12, v4
v_cndmask_b32 v73, 0, v74, vcc
''')
a(f'''
v_lshrrev_b32 v54, 1, v3
v_lshlrev_b32 v54, 8, v54
v_lshl_add_u32 v54, v4, 4, v54
v_and_b32 v55, 1, v3
v_lshl_add_u32 v54, v55, 3, v54
s_lshl_b32 s56, s61, 3
s_add_u32 s56, s56, s54
s_lshl_b32 s56, s56, 4
s_add_u32 s56, s56, s60
s_lshl_b32 s56, s56, 9
s_add_u32 s56, s56, {WS_GU}
s_waitcnt vmcnt(0)
v_lshlrev_b32 v61, 16, v60
v_and_b32 v62, 0xffff0000, v60
s_barrier
''')
stamp(7)
for mtx in range(2):
    for e in range(2):
        for hh in range(2):
            d = 16 + mtx * 8 + e * 4 + hh * 2
            a(f'ds_read_b64_tr_b16 v[{d}:{d+1}], v{13+e} offset:{mtx*16384 + hh*8192}')
poll4(32, 'v2', 's55', 'v56', 'v57')
stamp(8)
reduce8(32, 'v36')
a('''
ds_write_b32 v52, v32
s_waitcnt lgkmcnt(0)
s_barrier
ds_read2_b64 v[36:39], v53 offset0:0 offset1:16
ds_read2_b64 v[40:43], v53 offset0:32 offset1:48
ds_read2_b64 v[44:47], v53 offset0:64 offset1:80
ds_read2_b64 v[48:51], v53 offset0:96 offset1:112
s_waitcnt lgkmcnt(0)
v_pk_add_f32 v[36:37], v[36:37], v[38:39]
v_pk_add_f32 v[40:41], v[40:41], v[42:43]
v_pk_add_f32 v[44:45], v[44:45], v[46:47]
v_pk_add_f32 v[48:49], v[48:49], v[50:51]
v_pk_add_f32 v[36:37], v[36:37], v[40:41]
v_pk_add_f32 v[44:45], v[44:45], v[48:49]
v_pk_add_f32 v[36:37], v[36:37], v[44:45]
v_cvt_pk_bf16_f32 v38, v36, v37
v_lshlrev_b32 v36, 16, v38
v_and_b32 v37, 0xffff0000, v38
v_add_f32 v36, v36, v61
v_add_f32 v37, v37, v62
v_cvt_pk_bf16_f32 v38, v36, v37
''')
for i in range(4):
    a(f'v_and_or_b32 v{40+i}, v38, v{64+i}, v72')
for i in range(4):
    a(f'v_and_or_b32 v{44+i}, v38, v{68+i}, v73')
a('''
v_mfma_f32_16x16x32_bf16 v[48:51], v[40:43], v[16:19], 0
v_mfma_f32_16x16x32_bf16 v[76:79], v[40:43], v[24:27], 0
v_mfma_f32_16x16x32_bf16 v[48:51], v[44:47], v[20:23], v[48:51]
v_mfma_f32_16x16x32_bf16 v[76:79], v[44:47], v[28:31], v[76:79]
v_add_f32 v48, v48, v49
v_add_f32 v50, v50, v51
v_add_f32 v58, v48, v50
v_add_f32 v76, v76, v77
v_add_f32 v78, v78, v79
v_add_f32 v59, v76, v78
''')
tag('v58'); tag('v59')
a(f'buffer_store_dwordx2 v[58:59], v54, {sWS}, s56 offen sc1')
stamp(9)
endwave()

a.label('L_fin')
a(f'''
s_cmp_eq_u32 s54, 7
s_cbranch_scc1 L_wend2
s_sub_u32 s60, s5, 30
s_lshl_b32 s61, s4, 1
s_add_u32 s60, s60, s61
s_mul_i32 s55, s60, 7168
s_lshl_b32 s56, s54, 10
s_add_u32 s55, s55, s56
s_add_u32 s55, s55, {WS_Z}
''')
rf_addrs()
poll4(32, 'v2', 's55', 'v56', 'v57')
stamp(8)
reduce8(32, 'v36')
a('''
ds_write_b32 v52, v32
s_waitcnt lgkmcnt(0)
s_barrier
''')
a.label('L_wend2')
endwave()

a.label('L_helper')
a(f'''
buffer_load_dwordx4 v[8:11], v2, {sX}, 0 offen
v_lshlrev_b32 v5, 1, v3
v_and_b32 v6, 7, v0
v_xor_b32 v5, v5, v6
v_lshlrev_b32 v5, 4, v5
v_lshrrev_b32 v6, 3, v0
v_lshl_add_u32 v5, v6, 13, v5
s_lshr_b32 s60, s5, 3
s_and_b32 s61, s5, 7
s_lshl_b32 s54, s60, 20
s_lshl_b32 s55, s4, 10
s_add_u32 s54, s54, s55
s_lshl_b32 s55, s61, 7
s_add_u32 s54, s54, s55
''')
for i in range(16):
    a(f's_mov_b32 m0, {L_WQ + i*1024}')
    a(f'buffer_load_dwordx4 v5, {sWQ}, s54 offen nt lds')
    a('s_add_u32 s54, s54, 65536')
a('s_barrier')
stamp(1)
a(f'''
v_lshrrev_b32 v5, 2, v0
v_bfe_u32 v6, v0, 3, 2
v_lshlrev_b32 v6, 5, v6
v_lshl_add_u32 v6, v5, 7, v6
v_and_b32 v7, 3, v0
v_lshl_add_u32 v6, v7, 3, v6
v_add_u32 v120, {L_WQ}, v6
v_xor_b32 v121, 32, v120
v_xor_b32 v122, 64, v120
v_xor_b32 v123, 96, v120
s_lshl_b32 s55, s60, 8
s_add_u32 s55, s55, {L_XN}
v_lshl_add_u32 v124, v3, 3, s55
v_add_u32 v125, {L_XN}, v2
s_waitcnt vmcnt(16)
''')
stamp(2)
for i in range(4):
    a(f'v_lshlrev_b32 v{12+2*i}, 16, v{8+i}')
    a(f'v_and_b32 v{13+2*i}, 0xffff0000, v{8+i}')
a('''
v_add_f32 v20, v12, v13
v_add_f32 v21, v14, v15
v_add_f32 v22, v16, v17
v_add_f32 v23, v18, v19
v_add_f32 v20, v20, v21
v_add_f32 v22, v22, v23
v_add_f32 v20, v20, v22
''')
allreduce('add', 'v20', 'v21')
a('v_mul_f32 v20, 0x3b000000, v20')
for i in range(8):
    a(f'v_sub_f32 v{24+i}, v{12+i}, v20')
a('v_mul_f32 v21, v24, v24')
for i in range(1, 8):
    a(f'v_fmac_f32 v21, v{24+i}, v{24+i}')
allreduce('add', 'v21', 'v22')
a('v_mul_f32 v21, 0x3b000000, v21')
bf16r('v20'); bf16r('v21')
a('v_add_f32 v21, 0x3727c5ac, v21')
bf16r('v21')
a('v_sqrt_f32 v21, v21')
bf16r('v21')
a('v_rcp_f32 v21, v21')
for i in range(8):
    a(f'v_sub_f32 v{24+i}, v{12+i}, v20')
for i in range(4):
    a(f'v_cvt_pk_bf16_f32 v{8+i}, v{24+2*i}, v{25+2*i}')
for i in range(4):
    a(f'v_lshlrev_b32 v{24+2*i}, 16, v{8+i}')
    a(f'v_and_b32 v{25+2*i}, 0xffff0000, v{8+i}')
for i in range(8):
    a(f'v_mul_f32 v{24+i}, v{24+i}, v21')
for i in range(4):
    a(f'v_cvt_pk_bf16_f32 v{8+i}, v{24+2*i}, v{25+2*i}')
a('ds_write_b128 v125, v[8:11]')
for t in range(4):
    a(f'ds_read2_b64 v[{12+4*t}:{15+4*t}], v124 offset0:{8*t} offset1:{8*t+4}')
a('s_waitcnt lgkmcnt(0)')
get_tags()
a(f'''
v_lshlrev_b32 v7, 2, v0
s_lshl_b32 s54, s4, 13
s_lshl_b32 s55, s60, 11
s_add_u32 s55, s55, s54
s_lshl_b32 s56, s61, 8
s_add_u32 s55, s55, s56
s_add_u32 s55, s55, {WS_QP}
s_add_u32 s54, s54, {WS_QP}
s_add_u32 s56, s54, 4096
''')
stamp(3)
for t in range(4):
    a(f's_waitcnt vmcnt({12 - 4*t})')
    for ct in range(4):
        for hh in range(2):
            d = 32 + (t * 4 + ct) * 4 + hh * 2
            a(f'ds_read_b64_tr_b16 v[{d}:{d+1}], v{120+ct} offset:{t*4096 + hh*2048}')
    if t > 0:
        tt = t - 1
        a('s_waitcnt lgkmcnt(8)')
        for ct in range(4):
            d = 32 + (tt * 4 + ct) * 4
            acc = f'v[{96+4*ct}:{99+4*ct}]'
            a(f'v_mfma_f32_16x16x32_bf16 {acc}, v[{12+4*tt}:{15+4*tt}], v[{d}:{d+3}], {acc if tt else 0}')
for ct in range(4):
    a(f's_waitcnt lgkmcnt({6 - 2*ct})')
    d = 32 + (12 + ct) * 4
    acc = f'v[{96+4*ct}:{99+4*ct}]'
    a(f'v_mfma_f32_16x16x32_bf16 {acc}, v[24:27], v[{d}:{d+3}], {acc}')
stamp(4)
a('''
v_cmp_eq_u32 vcc, 1, v3
v_cndmask_b32 v96, v96, v100, vcc
v_cmp_eq_u32 vcc, 2, v3
v_cndmask_b32 v96, v96, v104, vcc
v_cmp_eq_u32 vcc, 3, v3
v_cndmask_b32 v96, v96, v108, vcc
''')
tag('v96')
a(f'buffer_store_dword v96, v7, {sWS}, s55 offen sc1')
stamp(5)
L = a.newlabel('Lq'); D = a.newlabel('Lqd')
a(f's_mov_b32 s53, {SPIN_G}')
a.label(L)
for i in range(8):
    a(f'buffer_load_dwordx4 v[{32+4*i}:{35+4*i}], v2, {sWS}, {"s54" if i < 4 else "s56"} offen offset:{(i & 3)*1024} sc1')
a('s_sub_u32 s53, s53, 1')
a(f's_cbranch_scc1 {D}')
a('v_mov_b32 v8, 0')
for i in range(8):
    a(f's_waitcnt vmcnt({7-i})')
    a(f'v_bitop3_b32 v9, v{32+4*i}, v{33+4*i}, v1 bitop3:0x7e')
    a(f'v_bitop3_b32 v10, v{34+4*i}, v{35+4*i}, v1 bitop3:0x7e')
    a('v_or3_b32 v8, v8, v9, v10')
    for c in range(4):
        a(f'v_and_b32 v{32+4*i+c}, s50, v{32+4*i+c}')
a('v_and_b32 v8, 0xff, v8')
a('v_cmp_ne_u32 vcc, 0, v8')
a(f's_cbranch_vccnz {L}')
a.label(D)
a('s_waitcnt vmcnt(0)')
stamp(6)
for h in range(2):
    for c in (0, 2):
        r = lambda k: f'v[{32+4*(2*k+h)+c}:{33+4*(2*k+h)+c}]'
        a(f'v_pk_add_f32 {r(0)}, {r(0)}, {r(1)}')
        a(f'v_pk_add_f32 {r(2)}, {r(2)}, {r(3)}')
        a(f'v_pk_add_f32 {r(0)}, {r(0)}, {r(2)}')
a(f'''
v_cvt_pk_bf16_f32 v8, v32, v33
v_cvt_pk_bf16_f32 v9, v34, v35
v_cvt_pk_bf16_f32 v10, v36, v37
v_cvt_pk_bf16_f32 v11, v38, v39
v_lshlrev_b32 v12, 3, v0
v_add_u32 v12, {L_Q}, v12
ds_write_b64 v12, v[8:9]
ds_write_b64 v12, v[10:11] offset:512
''')
lds_signal(F_Q, 'v13', 'v14')
stamp(7)
a('''
s_waitcnt lgkmcnt(0)
s_barrier
s_cmp_ge_u32 s5, 30
s_cbranch_scc1 L_hfin
s_cmp_ge_u32 s5, 16
s_cbranch_scc1 L_hf
''')
a(f'''
v_and_b32 v5, 31, v0
v_lshlrev_b32 v6, 4, v5
s_lshl_b32 s54, s4, 11
s_lshr_b32 s55, s5, 2
s_lshl_b32 s55, s55, 9
s_add_u32 s54, s54, s55
s_add_u32 s54, s54, {WS_ST}
''')
poll_rec(8, 'v6', 's54', 'v12', 'v13')
stamp(8)
a(f'''
v_mov_b32 v14, v8
''')
allreduce('max', 'v14', 'v15')
a(f'''
s_mov_b32 s58, {LOG2E}
v_sub_f32 v8, v8, v14
v_mul_f32 v8, s58, v8
v_exp_f32 v8, v8
v_mul_f32 v9, v8, v9
''')
allreduce('add', 'v9', 'v15')
a(f'''
v_mul_f32 v9, 0.5, v9
v_rcp_f32 v9, v9
v_lshlrev_b32 v6, 2, v5
v_add_u32 v6, {L_WG}, v6
v_mul_f32 v8, v8, v9
ds_write_b32 v6, v8
s_waitcnt lgkmcnt(0)
s_barrier
s_cmp_ge_u32 s5, 14
s_cbranch_scc1 L_hend
s_barrier
s_barrier
''')
a(f'''
v_lshlrev_b32 v6, 4, v4
s_mov_b32 s54, {WS_FS}
''')
poll_rec(8, 'v6', 's54', 'v12', 'v13')
stamp(9)
for v in ('v8', 'v9'):
    a(f'v_add_f32_dpp {v}, {v}, {v} quad_perm:[1,0,3,2] row_mask:0xf bank_mask:0xf')
    a(f'v_add_f32_dpp {v}, {v}, {v} quad_perm:[2,3,0,1] row_mask:0xf bank_mask:0xf')
    a(f'v_add_f32_dpp {v}, {v}, {v} row_half_mirror row_mask:0xf bank_mask:0xf')
    a(f'v_add_f32_dpp {v}, {v}, {v} row_mirror row_mask:0xf bank_mask:0xf')
a('''
v_mul_f32 v8, 0x3b000000, v8
v_mul_f32 v9, 0x3b000000, v9
v_fma_f32 v9, -v8, v8, v9
v_max_f32 v9, 0, v9
''')
bf16r('v8'); bf16r('v9')
a('v_add_f32 v9, 0x3727c5ac, v9')
bf16r('v9')
a('v_sqrt_f32 v9, v9')
bf16r('v9')
a('v_rcp_f32 v9, v9')
a(f'''
v_mov_b32 v6, {L_MU}
ds_write_b64 v6, v[8:9]
s_waitcnt lgkmcnt(0)
s_barrier
''')
a.label('L_hend')
endwave()

a.label('L_hf')
a(f'''
s_sub_u32 s60, s5, 16
s_lshl_b32 s60, s60, 3
s_add_u32 s60, s60, s4
s_cmp_ge_u32 s60, 16
s_cbranch_scc1 L_hend2
v_and_b32 v5, 31, v0
v_lshlrev_b32 v6, 1, v5
s_lshl_b32 s54, s60, 6
buffer_load_ushort v20, v6, {sX}, s54 offen
v_lshlrev_b32 v6, 2, v5
v_add_u32 v7, {L_RB}, v6
s_lshl_b32 s54, s60, 7
s_add_u32 s54, s54, {WS_H}
s_lshl_b32 s55, s60, 4
s_add_u32 s55, s55, {WS_FS}
v_mov_b32 v26, s51
v_mov_b32 v27, s52
v_mov_b32 v28, 0
s_waitcnt vmcnt(0)
v_lshlrev_b32 v20, 16, v20
s_barrier
s_barrier
''')
for i in range(4):
    a(f'ds_read2_b32 v[{8+2*i}:{9+2*i}], v7 offset0:{64*i} offset1:{64*i+32}')
a('''
s_waitcnt lgkmcnt(0)
v_add_f32 v8, v8, v9
v_add_f32 v10, v10, v11
v_add_f32 v12, v12, v13
v_add_f32 v14, v14, v15
v_add_f32 v8, v8, v10
v_add_f32 v12, v12, v14
v_add_f32 v8, v8, v12
''')
bf16r('v8')
a('v_add_f32 v8, v8, v20')
bf16r('v8')
a('''
v_mov_b32 v24, v8
v_mul_f32 v25, v8, v8
''')
for v in ('v24', 'v25'):
    a(f'v_add_f32_dpp {v}, {v}, {v} quad_perm:[1,0,3,2] row_mask:0xf bank_mask:0xf')
    a(f'v_add_f32_dpp {v}, {v}, {v} quad_perm:[2,3,0,1] row_mask:0xf bank_mask:0xf')
    a(f'v_add_f32_dpp {v}, {v}, {v} row_half_mirror row_mask:0xf bank_mask:0xf')
    a(f'v_add_f32_dpp {v}, {v}, {v} row_mirror row_mask:0xf bank_mask:0xf')
a('''
v_mov_b32 v9, v24
v_mov_b32 v10, v25
v_permlane16_swap_b32 v24, v9
v_permlane16_swap_b32 v25, v10
v_add_f32 v24, v24, v9
v_add_f32 v25, v25, v10
''')
tag('v24'); tag('v25'); tag('v8')
a('s_mov_b64 exec, 1')
a(f'buffer_store_dwordx4 v[24:27], v28, {sWS}, s55 offen sc1')
a('s_mov_b32 s56, -1')
a('s_mov_b32 s57, 0')
a('s_mov_b64 exec, s[56:57]')
a(f'buffer_store_dword v8, v6, {sWS}, s54 offen sc1')
a('s_mov_b64 exec, -1')
stamp(9)
a.label('L_hend2')
endwave()

a.label('L_hfin')
a(f'''
s_sub_u32 s60, s5, 30
s_lshl_b32 s61, s4, 1
s_add_u32 s60, s60, s61
v_and_b32 v5, 31, v0
v_lshlrev_b32 v6, 2, v5
v_add_u32 v7, {L_RB}, v6
s_lshl_b32 s54, s60, 7
s_add_u32 s54, s54, {WS_H}
''')
L = a.newlabel('Lh'); D = a.newlabel('Lhd')
a(f's_mov_b32 s53, {SPIN_G}')
a.label(L)
a(f'buffer_load_dword v20, v6, {sWS}, s54 offen sc1')
a('s_sub_u32 s53, s53, 1')
a(f's_cbranch_scc1 {D}')
a('s_waitcnt vmcnt(0)')
a('v_xor_b32 v21, v20, v1')
a('v_and_b32 v21, 0xff, v21')
a('v_cmp_ne_u32 vcc, 0, v21')
a(f's_cbranch_vccnz {L}')
a.label(D)
a(f'''
s_waitcnt vmcnt(0)
v_and_b32 v20, s50, v20
v_lshlrev_b32 v6, 1, v5
s_lshl_b32 s54, s60, 6
v_mov_b32 v22, s7
v_mov_b32 v23, 0
s_barrier
''')
stamp(8)
for i in range(3):
    a(f'ds_read2_b32 v[{8+2*i}:{9+2*i}], v7 offset0:{64*i} offset1:{64*i+32}')
a('ds_read_b32 v14, v7 offset:768')
a('''
s_waitcnt lgkmcnt(0)
v_add_f32 v8, v8, v9
v_add_f32 v10, v10, v11
v_add_f32 v12, v12, v13
v_add_f32 v8, v8, v10
v_add_f32 v12, v12, v14
v_add_f32 v8, v8, v12
''')
bf16r('v8')
a('v_add_f32 v8, v8, v20')
a('v_cvt_pk_bf16_f32 v8, v8, v8')
a('s_mov_b32 s56, -1')
a('s_mov_b32 s57, 0')
a('s_mov_b64 exec, s[56:57]')
a(f'buffer_store_short v8, v6, {sOUT}, s54 offen')
a('s_cmp_lg_u32 s60, 0')
a('s_cbranch_scc1 L_hend3')
a('s_mov_b64 exec, 1')
a(f'buffer_store_dword v22, v23, {sWS}, 0 offen')
a.label('L_hend3')
if DBGT:
    a('s_memrealtime s[88:89]')
    a('s_waitcnt lgkmcnt(0)')
    a('s_mov_b64 exec, 1')
    a('v_mov_b32 v22, s90')
    a('v_mov_b32 v23, s88')
    a('s_lshr_b32 s60, s60, 1')
    a('s_lshl_b32 s60, s60, 3')
    a('v_mov_b32 v24, 0')
    a('buffer_store_dwordx2 v[22:23], v24, s[92:95], s60 offen')
a('s_mov_b64 exec, -1')
stamp(9)
endwave()
a.label('L_exit')
a('s_endpgm')

body = a.finish()
hdr = open(f'cdna_kernels/{NAME}.s.ref').read().split('\n')
comments = [l for l in hdr if l.startswith(';') and '@launch' not in l]
out = '\n'.join(comments) + f'\n; @launch grid=(256,1,1) block=(640,1,1) lds={LDS_BYTES}\n'
out += f'''.amdgcn_target "amdgcn-amd-amdhsa--gfx950"
.text
.globl {NAME}_kernel
.p2align 8
.type {NAME}_kernel,@function
{NAME}_kernel:
{body}
.section .rodata,"a"
.p2align 6
.amdhsa_kernel {NAME}_kernel
  .amdhsa_next_free_vgpr 128
  .amdhsa_next_free_sgpr 100
  .amdhsa_accum_offset 128
  .amdhsa_group_segment_fixed_size 0
  .amdhsa_kernarg_size 96
  .amdhsa_user_sgpr_count 2
  .amdhsa_user_sgpr_kernarg_segment_ptr 1
  .amdhsa_system_sgpr_workgroup_id_x 1
.end_amdhsa_kernel
'''
dst = [x for x in sys.argv[1:] if not x.startswith('--')]
open(dst[0] if dst else f'cdna_kernels/{NAME}.s', 'w').write(out)
```

```python
import sys
from asmlib import Asm

NAME = "sequential_preLN__sliding_block_cached__glu_gated_reglu__decode"
STAMPS = '--stamps' in sys.argv
def opt(name, default):
    for x in sys.argv:
        if x.startswith(f'--{name}='): return int(x.split('=')[1])
    return default
DEPTH = opt('depth', 28)
QDELAY = opt('qdelay', 4)
QGAP = opt('qgap', 6)
NA = opt('na', 48)

WS_QP = 0x1000
WS_ST = 0x11000
WS_PP = 0x20000
WS_Y = 0xA0000
WS_GU = 0xC0000
WS_FS = 0x130000
WS_Z = 0x140000
WS_B = 0x200000
WS_STAMP = 0x400000
WS_BYTES = 0x500000

L_K = 0x0000
L_V = 0x8000
L_W = 0x10000
L_WQ = 0x18000
L_XN = 0x1C000
L_Q = 0x1C400
L_P = 0x1C800
L_RB = 0x1D800
L_FL = 0x1E800
L_MX = 0x1E900
L_LS = 0x1E940
L_WG = 0x1E980
L_MU = 0x1EA80
LDS_BYTES = 0x1EB00
F_Q, F_C1, F_C2, F_PROG = L_FL, L_FL + 4, L_FL + 8, L_FL + 12

SPIN_G = 1 << 14
SPIN_L = 1 << 16

sX, sK, sV, sWQ, sWO, sWG, sWU, sWD, sOUT, sWS = [f's[{8+4*i}:{11+4*i}]' for i in range(10)]
SRD_BASE = {'X': 8, 'K': 12, 'V': 16, 'WQ': 20, 'WO': 24, 'WG': 28, 'WU': 32, 'WD': 36, 'OUT': 40, 'WS': 44}
SRD_SIZE = {'X': 1024, 'K': 64 << 20, 'V': 64 << 20, 'WQ': 4 << 20, 'WO': 4 << 20, 'WG': 512 * 3584, 'WU': 512 * 3584,
            'WD': 1792 * 1024, 'OUT': 1024, 'WS': WS_BYTES}
SRD_ARG = {'X': 64, 'K': 66, 'V': 68, 'WQ': 70, 'WO': 72, 'WG': 76, 'WU': 78, 'WD': 80, 'OUT': 82, 'WS': 86}
LOG2E = 0x3fb8aa3b
SCALE = 0x3db504f3

a = Asm()

def stamp(idx):
    if STAMPS: a(f's_memrealtime s[{64+2*idx}:{65+2*idx}]')

def stamp_flush():
    if not STAMPS: return
    a('s_waitcnt lgkmcnt(0)')
    a('s_mov_b64 exec, -1')
    a('v_mov_b32 v127, 0')
    for i in range(13):
        a(f'v_writelane_b32 v127, s{64+2*i}, {i}')
    a('s_mov_b64 exec, 0xffff')
    a('s_mul_i32 s92, s2, 10')
    a('s_add_u32 s92, s92, s3')
    a('s_lshl_b32 s92, s92, 6')
    a(f's_add_u32 s92, s92, {WS_STAMP}')
    a('v_lshlrev_b32 v126, 2, v0')
    a(f'buffer_store_dword v127, v126, {sWS}, s92 offen')

def row16_reduce(op, v):
    o = {'add': 'v_add_f32', 'max': 'v_max_f32'}[op]
    a(f'{o}_dpp {v}, {v}, {v} quad_perm:[1,0,3,2] row_mask:0xf bank_mask:0xf')
    a(f'{o}_dpp {v}, {v}, {v} quad_perm:[2,3,0,1] row_mask:0xf bank_mask:0xf')
    a(f'{o}_dpp {v}, {v}, {v} row_half_mirror row_mask:0xf bank_mask:0xf')
    a(f'{o}_dpp {v}, {v}, {v} row_mirror row_mask:0xf bank_mask:0xf')

def row16_reduce2(op, v, u):
    o = {'add': 'v_add_f32', 'max': 'v_max_f32'}[op]
    for m in ('quad_perm:[1,0,3,2]', 'quad_perm:[2,3,0,1]', 'row_half_mirror', 'row_mirror'):
        a(f'{o}_dpp {v}, {v}, {v} {m} row_mask:0xf bank_mask:0xf')
        a(f'{o}_dpp {u}, {u}, {u} {m} row_mask:0xf bank_mask:0xf')

def swap16_reduce(op, v, t):
    o = {'add': 'v_add_f32', 'max': 'v_max_f32'}[op]
    a(f'v_mov_b32 {t}, {v}')
    a(f'v_permlane16_swap_b32 {v}, {t}')
    a(f'{o} {v}, {v}, {t}')

def swap32_reduce(op, v, t):
    o = {'add': 'v_add_f32', 'max': 'v_max_f32'}[op]
    a(f'v_mov_b32 {t}, {v}')
    a(f'v_permlane32_swap_b32 {v}, {t}')
    a(f'{o} {v}, {v}, {t}')

def rows_reduce(op, v, t):
    swap16_reduce(op, v, t); swap32_reduce(op, v, t)

def allreduce(op, v, t):
    row16_reduce(op, v); rows_reduce(op, v, t)

def bf16r(v):
    a(f'v_cvt_pk_bf16_f32 {v}, {v}, {v}')
    a(f'v_and_b32 {v}, 0xffff0000, {v}')

def tag(v):
    a(f'v_bfi_b32 {v}, s50, {v}, v1')

def get_tags():
    a('s_add_u32 s7, s7, 1')
    a('s_and_b32 s6, s7, 0xff')
    a('v_mov_b32 v1, s6')
    a('s_mul_i32 s51, s7, 0x9E3779B1')
    a('s_xor_b32 s51, s51, 0x5bd1e995')
    a('s_mul_i32 s52, s7, 0x85EBCA77')
    a('s_xor_b32 s52, s52, 0xc2b2ae3d')

def lds_wait(addr, val, vt, va, cmp='ne'):
    L = a.newlabel('Lw'); D = a.newlabel('Lwd')
    a(f'v_mov_b32 {va}, {addr}')
    a(f's_mov_b32 s53, {SPIN_L}')
    a.label(L)
    a(f'ds_read_b32 {vt}, {va}')
    a('s_sub_u32 s53, s53, 1')
    a(f's_cbranch_scc1 {D}')
    a('s_waitcnt lgkmcnt(0)')
    a(f'v_cmp_{cmp}_u32 vcc, {val}, {vt}')
    a(f's_cbranch_vccnz {L}')
    a.label(D)
    a('s_waitcnt lgkmcnt(0)')

def lds_signal(addr, vt, va):
    a(f'v_mov_b32 {va}, {addr}')
    a(f'v_mov_b32 {vt}, 1')
    a('s_mov_b64 exec, 1')
    a(f'ds_add_u32 {va}, {vt}')
    a('s_mov_b64 exec, -1')

def poll_head(soff, dual):
    L = a.newlabel('Lp'); D = a.newlabel('Lpd'); R = a.newlabel('Lpr')
    a(f's_mov_b32 s53, {SPIN_G}')
    if dual:
        a(f's_branch {L}')
        a.label(R)
        a(f's_cmp_lt_u32 s53, {SPIN_G - NA}')
        a(f's_cselect_b32 s62, {WS_B}, 0')
        a(f's_xor_b32 {soff}, {soff}, s62')
    else:
        a.label(R)
    a.label(L)
    return R, D

def poll4(dst, voff, soff, t0, dual):
    R, D = poll_head(soff, dual)
    a(f'buffer_load_dwordx4 v[{dst}:{dst+3}], {voff}, {sWS}, {soff} offen sc1')
    a('s_sub_u32 s53, s53, 1')
    a(f's_cbranch_scc1 {D}')
    a('s_waitcnt vmcnt(0)')
    for i in range(4):
        a(f'v_xor_b32 v{dst+i}, v{dst+i}, v1')
    a(f'v_or3_b32 {t0}, v{dst}, v{dst+1}, v{dst+2}')
    a(f'v_bitop3_b32 {t0}, {t0}, v{dst+3}, s50 bitop3:0x54')
    a(f'v_cmp_ne_u32 vcc, 0, {t0}')
    a(f's_cbranch_vccnz {R}')
    a.label(D)
    a('s_waitcnt vmcnt(0)')

def poll_rec(dst, voff, soff, t0, dual):
    R, D = poll_head(soff, dual)
    a(f'buffer_load_dwordx4 v[{dst}:{dst+3}], {voff}, {sWS}, {soff} offen sc1')
    a('s_sub_u32 s53, s53, 1')
    a(f's_cbranch_scc1 {D}')
    a('s_waitcnt vmcnt(0)')
    a(f'v_xor_b32 v{dst}, v{dst}, v1')
    a(f'v_xor_b32 v{dst+1}, v{dst+1}, v1')
    a(f'v_xor_b32 v{dst+2}, s51, v{dst+2}')
    a(f'v_xor_b32 v{dst+3}, s52, v{dst+3}')
    a(f'v_bitop3_b32 {t0}, v{dst}, v{dst+1}, s50 bitop3:0x54')
    a(f'v_or3_b32 {t0}, {t0}, v{dst+2}, v{dst+3}')
    a(f'v_cmp_ne_u32 vcc, 0, {t0}')
    a(f's_cbranch_vccnz {R}')
    a.label(D)
    a('s_waitcnt vmcnt(0)')

def publish(kind, data, voff, soff, dual):
    if dual:
        a(f'buffer_store_{kind} {data}, {voff}, {sWS}, {soff} offen')
        a(f's_add_u32 s62, {soff}, {WS_B}')
        a(f'buffer_store_{kind} {data}, {voff}, {sWS}, s62 offen sc1')
    else:
        a(f'buffer_store_{kind} {data}, {voff}, {sWS}, {soff} offen sc1')

def reduce8(d):
    a(f'v_permlane32_swap_b32 v{d}, v{d+2}')
    a(f'v_permlane32_swap_b32 v{d+1}, v{d+3}')
    a(f'v_add_f32 v{d}, v{d}, v{d+2}')
    a(f'v_add_f32 v{d+1}, v{d+1}, v{d+3}')
    a(f'v_permlane16_swap_b32 v{d}, v{d+1}')
    a(f'v_add_f32 v{d}, v{d}, v{d+1}')
    a(f'v_add_f32_dpp v{d}, v{d}, v{d} row_ror:8 row_mask:0xf bank_mask:0xf')

def endwave():
    stamp_flush()
    a('s_endpgm')

a(f'''
s_cmp_ge_u32 s2, 256
s_cbranch_scc1 L_exit
s_load_dwordx16 s[64:79], s[0:1], 0
s_load_dwordx8 s[80:87], s[0:1], 64
v_lshrrev_b32 v1, 6, v0
v_and_b32 v0, 63, v0
v_readfirstlane_b32 s3, v1
s_and_b32 s4, s2, 7
s_lshr_b32 s5, s2, 3
s_mov_b32 s50, 0xffffff00
''')
for k, b in SRD_BASE.items():
    a(f's_mov_b32 s{b+2}, {SRD_SIZE[k]}')
    a(f's_mov_b32 s{b+3}, 0x00020000')
a(f'''
v_mov_b32 v2, 0
v_lshlrev_b32 v3, 2, v0
v_add_u32 v3, {L_FL}, v3
ds_write_b32 v3, v2
v_lshlrev_b32 v2, 4, v0
v_lshrrev_b32 v3, 4, v0
v_and_b32 v4, 15, v0
s_waitcnt lgkmcnt(0)
''')
for k, b in SRD_BASE.items():
    a(f's_mov_b64 s[{b}:{b+1}], s[{SRD_ARG[k]}:{SRD_ARG[k]+1}]')
a('s_load_dword s7, s[44:45], 0')
if STAMPS:
    for i in range(1, 13): a(f's_mov_b32 s{64+2*i}, 0')
stamp(0)
a('''
s_cmp_eq_u32 s3, 0
s_cbranch_scc1 L_helper
s_cmp_lg_u32 s3, 1
s_cbranch_scc1 L_worker
''')

a.label('L_loader')
a(f'''
v_xor_b32 v5, v4, v3
v_lshlrev_b32 v5, 4, v5
v_lshl_add_u32 v5, v3, 8, v5
v_xor_b32 v6, 64, v5
v_xor_b32 v7, 128, v5
v_xor_b32 v8, 192, v5
v_lshlrev_b32 v9, 1, v3
v_xor_b32 v9, v4, v9
v_lshlrev_b32 v9, 4, v9
v_lshl_add_u32 v9, v3, 8, v9
v_xor_b32 v10, 128, v9
s_lshl_b32 s57, s4, 23
s_lshl_b32 s58, s5, 15
s_add_u32 s57, s57, s58
s_add_u32 s57, s57, {28672*256}
s_mov_b32 s58, s57
v_mov_b32 v16, {F_PROG}
v_lshrrev_b32 v17, 5, v0
v_and_b32 v18, 31, v0
v_lshlrev_b32 v19, 1, v17
v_xor_b32 v18, v18, v19
v_lshlrev_b32 v18, 4, v18
s_setprio 2
s_barrier
''')
issued = [0]
def throttle_and_progress():
    n = issued[0]
    keep = DEPTH - 4
    if n > keep:
        a(f's_waitcnt vmcnt({keep})')
        done = (n - keep) // 4
        if done <= 16:
            a(f'v_mov_b32 v20, {done}')
            a('ds_write_b32 v16, v20')
for grp in range(16):
    isK = grp < 8
    base = (L_K if isK else L_V) + (grp & 7) * 4096
    a(f's_mov_b32 m0, {base}')
    for i in range(4):
        if isK: a(f'buffer_load_dwordx4 v{5+i}, {sK}, s57 offen offset:{i*1024} nt lds')
        else: a(f'buffer_load_dwordx4 v{9+(i&1)}, {sV}, s58 offen offset:{i*1024} nt lds')
    a(f's_add_u32 {"s57" if isK else "s58"}, {"s57" if isK else "s58"}, 4096')
    issued[0] += 4
    throttle_and_progress()
stamp(1)
a('''
s_cmp_ge_u32 s5, 16
s_cbranch_scc1 L_load_F
''')
a('''
v_lshlrev_b32 v19, 10, v17
v_add_u32 v12, v18, v19
v_xor_b32 v13, 64, v12
v_xor_b32 v14, 128, v12
v_xor_b32 v15, 192, v12
s_lshl_b32 s54, s4, 19
s_lshr_b32 s55, s5, 3
s_lshl_b32 s55, s55, 18
s_add_u32 s54, s54, s55
s_bfe_u32 s55, s5, 0x20001
s_lshl_b32 s55, s55, 15
s_add_u32 s54, s54, s55
s_and_b32 s55, s5, 1
s_lshl_b32 s55, s55, 9
s_add_u32 s54, s54, s55
''')
b1_done = False
for grp in range(8):
    for i in range(4):
        n = grp * 4 + i
        a(f's_mov_b32 m0, {L_W + n*1024}')
        a(f'buffer_load_dwordx4 v{12+i}, {sWO}, s54 offen nt lds')
        a(f's_add_u32 s54, s54, {2048 if n != 15 else 2048 + 96*1024}')
    issued[0] += 4
    n = issued[0]; keep = DEPTH - 4
    if not b1_done:
        if n - keep >= 64:
            a(f's_waitcnt vmcnt({n - 64})')
            stamp(2)
            a('s_barrier')
            b1_done = True
        else:
            throttle_and_progress()
    else:
        a(f's_waitcnt vmcnt({keep})')
if not b1_done:
    n = issued[0]
    for done in range((n - keep) // 4 + 1, 16):
        a(f's_waitcnt vmcnt({n - 4*done})')
        a(f'v_mov_b32 v20, {done}')
        a('ds_write_b32 v16, v20')
    a(f's_waitcnt vmcnt({n - 64})')
    stamp(2)
    a('s_barrier')
a('s_waitcnt vmcnt(0)')
stamp(3)
a('s_barrier')
a('s_cmp_eq_u32 s4, 7')
a('s_cbranch_scc1 L_load_end')
a('''
s_lshl_b32 s54, s4, 3
s_lshr_b32 s55, s5, 1
s_add_u32 s54, s54, s55
s_lshl_b32 s54, s54, 15
s_and_b32 s55, s5, 1
s_lshl_b32 s55, s55, 9
s_add_u32 s54, s54, s55
s_barrier
''')
for i in range(16):
    a(f's_mov_b32 m0, {L_WQ + i*1024}')
    a(f'buffer_load_dwordx4 v{12 + (i & 3)}, {sWD}, s54 offen nt lds')
    a('s_add_u32 s54, s54, 2048')
a('s_waitcnt vmcnt(0)')
stamp(4)
a('s_barrier')
a('s_branch L_load_end')
a.label('L_load_F')
a('''
v_mul_u32_u24 v19, 3584, v17
v_add_u32 v12, v18, v19
v_xor_b32 v13, 64, v12
v_xor_b32 v14, 128, v12
v_xor_b32 v15, 192, v12
s_sub_u32 s54, s5, 16
s_mul_i32 s54, s54, 32*3584
s_lshl_b32 s55, s4, 9
s_add_u32 s54, s54, s55
s_mov_b32 s55, s54
''')
keep = DEPTH - 4
for done in range((64 - keep) // 4 + 1, 16):
    a(f's_waitcnt vmcnt({64 - 4*done})')
    a(f'v_mov_b32 v20, {done}')
    a('ds_write_b32 v16, v20')
a('s_waitcnt vmcnt(0)')
stamp(2)
a('s_barrier')
a('s_cmp_eq_u32 s4, 7')
a('s_cbranch_scc1 L_load_end')
for i in range(16):
    a(f's_mov_b32 m0, {L_W + i*1024}')
    a(f'buffer_load_dwordx4 v{12 + (i & 3)}, {sWG}, s54 offen nt lds')
    a('s_add_u32 s54, s54, 7168')
for i in range(16):
    a(f's_mov_b32 m0, {L_W + 16384 + i*1024}')
    a(f'buffer_load_dwordx4 v{12 + (i & 3)}, {sWU}, s55 offen nt lds')
    a('s_add_u32 s55, s55, 7168')
a('s_waitcnt vmcnt(0)')
stamp(3)
a('s_barrier')
a.label('L_load_end')
endwave()

a.label('L_worker')
a(f'''
s_sub_u32 s54, s3, 2
s_barrier
s_waitcnt lgkmcnt(0)
''')
get_tags()
a('s_cmp_ge_u32 s54, 4')
a('s_cbranch_scc1 L_pv')
a(f'''
s_lshl_b32 s55, s54, 13
v_xor_b32 v5, v3, v4
v_lshlrev_b32 v5, 4, v5
v_lshl_add_u32 v5, v4, 8, v5
v_add_u32 v5, s55, v5
v_xor_b32 v6, 64, v5
v_xor_b32 v7, 128, v5
v_xor_b32 v8, 192, v5
v_and_b32 v9, 3, v0
v_lshlrev_b32 v10, 8, v9
v_lshl_add_u32 v10, v3, 4, v10
v_add_u32 v10, {L_Q}, v10
v_lshlrev_b32 v13, 4, v9
s_lshl_b32 s59, s54, 2
v_add_u32 v14, s59, v13
v_add_u32 v14, {L_MX}, v14
v_add_u32 v13, {L_MX}, v13
s_lshl_b32 s59, s54, 10
v_add_u32 v15, s59, v2
v_add_u32 v15, {L_P}, v15
s_lshl_b32 s60, s54, 1
s_add_u32 s60, s60, 2
''')
lds_wait(F_PROG, 's60', 'v11', 'v12', 'gt')
stamp(2)
for t in range(2):
    for kk in range(4):
        d = 16 + (t * 4 + kk) * 4
        a(f'ds_read_b128 v[{d}:{d+3}], v{5+kk} offset:{L_K + t*4096}')
a(f's_mov_b32 s58, {SCALE}')
a(f's_mov_b32 s59, {LOG2E}')
lds_wait(F_Q, 1, 'v11', 'v12')
stamp(3)
for kk in range(4):
    a(f'ds_read_b128 v[{48+kk*4}:{51+kk*4}], v10 offset:{kk*64}')
for kk in range(4):
    a(f's_waitcnt lgkmcnt({3-kk})')
    for t in range(2):
        d = 16 + (t * 4 + kk) * 4
        acc = f'v[{64+t*4}:{67+t*4}]'
        a(f'v_mfma_f32_16x16x32_bf16 {acc}, v[{d}:{d+3}], v[{48+kk*4}:{51+kk*4}], {acc if kk else 0}')
for i in range(4):
    a(f'v_cvt_pk_bf16_f32 v{72+i}, v{64+2*i}, v{65+2*i}')
for i in range(4):
    a(f'v_lshlrev_b32 v{64+2*i}, 16, v{72+i}')
    a(f'v_and_b32 v{65+2*i}, 0xffff0000, v{72+i}')
for i in range(8):
    a(f'v_mul_f32 v{64+i}, s58, v{64+i}')
for i in range(4):
    a(f'v_cvt_pk_bf16_f32 v{72+i}, v{64+2*i}, v{65+2*i}')
for i in range(4):
    a(f'v_lshlrev_b32 v{64+2*i}, 16, v{72+i}')
    a(f'v_and_b32 v{65+2*i}, 0xffff0000, v{72+i}')
a('''
v_max3_f32 v76, v64, v65, v66
v_max3_f32 v77, v67, v68, v69
v_max3_f32 v76, v76, v70, v71
v_max_f32 v76, v76, v77
''')
rows_reduce('max', 'v76', 'v77')
a('ds_write_b32 v14, v76')
lds_signal(F_C1, 'v11', 'v12')
lds_wait(F_C1, 4, 'v11', 'v12')
a('ds_read_b128 v[80:83], v13')
a('s_waitcnt lgkmcnt(0)')
a('''
v_max3_f32 v76, v80, v81, v82
v_max_f32 v76, v76, v83
v_mul_f32 v77, s59, v76
''')
for i in range(8):
    a(f'v_fma_f32 v{64+i}, v{64+i}, s59, -v77')
for i in range(8):
    a(f'v_exp_f32 v{64+i}, v{64+i}')
for i in range(4):
    a(f'v_cvt_pk_bf16_f32 v{72+i}, v{64+2*i}, v{65+2*i}')
a(f'''
ds_write_b128 v15, v[72:75]
v_add_f32 v64, v64, v65
v_add_f32 v66, v66, v67
v_add_f32 v68, v68, v69
v_add_f32 v70, v70, v71
v_add_f32 v64, v64, v66
v_add_f32 v68, v68, v70
v_add_f32 v64, v64, v68
''')
rows_reduce('add', 'v64', 'v65')
a(f'ds_write_b32 v14, v64 offset:{L_LS - L_MX}')
lds_signal(F_C2, 'v11', 'v12')
stamp(4)
a('s_cmp_lg_u32 s54, 0')
a('s_cbranch_scc1 L_pv')
lds_wait(F_C2, 4, 'v11', 'v12')
a(f'ds_read_b128 v[80:83], v13 offset:{L_LS - L_MX}')
a(f'''
v_lshlrev_b32 v15, 9, v9
s_lshl_b32 s59, s4, 11
s_lshl_b32 s60, s5, 4
s_add_u32 s59, s59, s60
s_add_u32 s59, s59, {WS_ST}
v_mov_b32 v86, s51
v_mov_b32 v87, s52
v_mov_b32 v84, v76
s_waitcnt lgkmcnt(0)
v_add_f32 v80, v80, v81
v_add_f32 v82, v82, v83
v_add_f32 v85, v80, v82
''')
tag('v84'); tag('v85')
a('s_mov_b64 exec, 0xf')
publish('dwordx4', 'v[84:87]', 'v15', 's59', True)
a('s_mov_b64 exec, -1')

a.label('L_pv')
a(f'''
v_lshrrev_b32 v5, 2, v0
v_and_b32 v6, 7, v5
v_xor_b32 v7, s54, v6
v_lshlrev_b32 v7, 5, v7
v_lshl_add_u32 v7, v5, 8, v7
v_and_b32 v8, 3, v0
v_lshl_add_u32 v7, v8, 3, v7
v_add_u32 v9, {L_P}, v2
''')
a(f'''
v_lshlrev_b32 v10, 6, v4
v_lshl_add_u32 v10, v3, 4, v10
s_lshl_b32 s55, s4, 16
s_lshl_b32 s56, s5, 11
s_add_u32 s55, s55, s56
s_lshl_b32 s56, s54, 8
s_add_u32 s55, s55, s56
s_add_u32 s55, s55, {WS_PP}
s_mov_b32 s56, 0x000f000f
s_mov_b32 s57, 0x000f000f
''')
lds_wait(F_C2, 4, 'v11', 'v12')
for t in range(4):
    a(f'ds_read_b128 v[{16+4*t}:{19+4*t}], v9 offset:{t*1024}')
lds_wait(F_PROG, 14, 'v11', 'v12', 'gt')
for t in range(3):
    for hh in range(2):
        d = 32 + t * 4 + hh * 2
        a(f'ds_read_b64_tr_b16 v[{d}:{d+1}], v7 offset:{L_V + t*8192 + hh*4096}')
for t in range(3):
    a(f's_waitcnt lgkmcnt({4 - 2*t})')
    a(f'v_mfma_f32_16x16x32_bf16 v[48:51], v[{32+4*t}:{35+4*t}], v[{16+4*t}:{19+4*t}], {"v[48:51]" if t else 0}')
stamp(5)
a('s_barrier')
for hh in range(2):
    a(f'ds_read_b64_tr_b16 v[{44+2*hh}:{45+2*hh}], v7 offset:{L_V + 3*8192 + hh*4096}')
a('s_waitcnt lgkmcnt(0)')
a('v_mfma_f32_16x16x32_bf16 v[48:51], v[44:47], v[28:31], v[48:51]')
a('s_mov_b64 exec, s[56:57]')
for i in range(4): tag(f'v{48+i}')
publish('dwordx4', 'v[48:51]', 'v10', 's55', True)
a('s_mov_b64 exec, -1')
stamp(6)
a(f'''
s_lshl_b32 s56, s54, 1
v_xor_b32 v7, s56, v6
v_lshlrev_b32 v7, 5, v7
v_lshl_add_u32 v7, v5, 9, v7
v_lshl_add_u32 v7, v8, 3, v7
v_add_u32 v13, {L_W}, v7
v_xor_b32 v14, 32, v13
s_cmp_ge_u32 s5, 16
s_cbranch_scc1 L_fstage
''')

a.label('L_ostage')
a(f'''
v_lshlrev_b32 v10, 11, v3
v_lshrrev_b32 v52, 3, v4
v_lshl_add_u32 v10, v52, 8, v10
v_and_b32 v53, 7, v4
v_lshl_add_u32 v10, v53, 4, v10
s_lshl_b32 s55, s4, 16
s_lshl_b32 s56, s54, 13
s_add_u32 s55, s55, s56
s_bfe_u32 s56, s5, 0x20001
s_lshl_b32 s56, s56, 9
s_add_u32 s55, s55, s56
s_lshr_b32 s56, s5, 3
s_lshl_b32 s56, s56, 7
s_add_u32 s55, s55, s56
s_add_u32 s55, s55, {WS_PP}
''')
a(f'''
s_lshl_b32 s56, s54, 4
v_lshl_add_u32 v15, v3, 2, s56
v_bfe_u32 v53, v4, 2, 1
v_lshl_add_u32 v15, v53, 7, v15
v_add_u32 v15, {L_WG}, v15
v_lshlrev_b32 v52, 3, v52
v_lshl_add_u32 v52, v53, 6, v52
v_and_b32 v53, 3, v4
v_lshl_add_u32 v52, v53, 4, v52
v_lshrrev_b32 v53, 5, v0
v_lshl_add_u32 v52, v53, 2, v52
v_and_b32 v53, 1, v3
v_mul_u32_u24 v53, 144, v53
v_add_u32 v52, v52, v53
s_mul_i32 s56, s54, 288
s_add_u32 s56, s56, {L_RB}
v_add_u32 v52, s56, v52
v_mul_u32_u24 v53, 144, v4
v_lshl_add_u32 v53, v3, 4, v53
v_add_u32 v53, {L_RB}, v53
''')
a(f'''
v_lshrrev_b32 v54, 5, v0
v_lshlrev_b32 v54, 6, v54
v_lshl_add_u32 v54, v4, 2, v54
s_and_b32 s56, s5, 1
s_lshl_b32 s56, s56, 3
s_add_u32 s56, s56, s54
s_lshl_b32 s56, s56, 6
s_lshl_b32 s57, s4, 3
s_add_u32 s56, s56, s57
s_lshr_b32 s57, s5, 1
s_add_u32 s56, s56, s57
s_lshl_b32 s56, s56, 7
s_add_u32 s56, s56, {WS_Y}
s_mov_b32 s58, 0x0000ffff
s_mov_b32 s59, 0x0000ffff
s_barrier
''')
stamp(7)
for e in range(2):
    for t in range(2):
        for hh in range(2):
            d = 16 + e * 8 + t * 4 + hh * 2
            a(f'ds_read_b64_tr_b16 v[{d}:{d+1}], v{13+e} offset:{t*16384 + hh*8192}')
a('ds_read_b32 v55, v15')
poll4(32, 'v10', 's55', 'v56', True)
stamp(8)
a('s_waitcnt lgkmcnt(0)')
for i in range(4):
    a(f'v_mul_f32 v{32+i}, v55, v{32+i}')
a('''
v_permlane32_swap_b32 v32, v34
v_permlane32_swap_b32 v33, v35
v_add_f32 v32, v32, v34
v_add_f32 v33, v33, v35
v_cvt_pk_bf16_f32 v32, v32, v33
ds_write_b32 v52, v32
s_waitcnt lgkmcnt(0)
s_barrier
ds_read_b128 v[36:39], v53
ds_read_b128 v[40:43], v53 offset:64
s_waitcnt lgkmcnt(1)
v_mfma_f32_16x16x32_bf16 v[44:47], v[36:39], v[16:19], 0
v_mfma_f32_16x16x32_bf16 v[48:51], v[36:39], v[24:27], 0
s_waitcnt lgkmcnt(0)
v_mfma_f32_16x16x32_bf16 v[44:47], v[40:43], v[20:23], v[44:47]
v_mfma_f32_16x16x32_bf16 v[48:51], v[40:43], v[28:31], v[48:51]
v_pk_add_f32 v[44:45], v[44:45], v[46:47]
v_pk_add_f32 v[48:49], v[48:49], v[50:51]
v_add_f32 v44, v44, v45
v_add_f32 v48, v48, v49
v_permlane32_swap_b32 v44, v48
v_add_f32 v44, v44, v48
''')
swap16_reduce('add', 'v44', 'v45')
a('s_mov_b64 exec, s[58:59]')
tag('v44')
publish('dword', 'v44', 'v54', 's56', False)
a('s_mov_b64 exec, -1')
stamp(9)
a('s_cmp_eq_u32 s4, 7')
a('s_cbranch_scc1 L_wend')

a.label('L_dstage')
a(f'''
v_add_u32 v13, {L_WQ}, v7
v_xor_b32 v14, 32, v13
s_lshl_b32 s60, s4, 3
s_lshr_b32 s61, s5, 1
s_add_u32 s60, s60, s61
s_and_b32 s61, s5, 1
s_lshl_b32 s55, s60, 13
s_lshl_b32 s56, s54, 10
s_add_u32 s55, s55, s56
s_add_u32 s55, s55, {WS_GU}
s_lshl_b32 s56, s54, 9
s_add_u32 s56, s56, {L_RB}
v_lshl_add_u32 v52, v0, 3, s56
v_lshrrev_b32 v53, 3, v4
v_lshlrev_b32 v53, 5, v53
v_bfe_u32 v55, v4, 2, 1
v_lshl_add_u32 v53, v55, 4, v53
v_lshl_add_u32 v53, v3, 2, v53
v_and_b32 v55, 3, v4
v_add_u32 v53, v53, v55
v_lshlrev_b32 v53, 3, v53
v_add_u32 v53, {L_RB}, v53
v_mov_b32 v15, {L_MU}
v_and_b32 v55, 1, v4
v_lshlrev_b32 v55, 4, v55
v_mov_b32 v56, 0xffff
v_lshlrev_b32 v56, v55, v56
v_lshrrev_b32 v55, 1, v4
''')
for i in range(8):
    a(f'v_cmp_eq_u32 vcc, {i}, v55')
    a(f'v_cndmask_b32 v{64+i}, 0, v56, vcc')
a(f'''
s_lshl_b32 s56, s61, 3
s_add_u32 s56, s56, s54
s_mul_i32 s56, s56, 56
s_add_u32 s56, s56, s60
s_lshl_b32 s56, s56, 7
s_add_u32 s56, s56, {WS_Z}
v_cmp_gt_u32 s[60:61], 8, v4
s_barrier
''')
stamp(10)
for e in range(2):
    for hh in range(2):
        d = 16 + e * 4 + hh * 2
        a(f'ds_read_b64_tr_b16 v[{d}:{d+1}], v{13+e} offset:{hh*8192}')
poll4(32, 'v2', 's55', 'v56', True)
stamp(11)
a('''
v_permlane32_swap_b32 v32, v33
v_permlane32_swap_b32 v34, v35
v_add_f32 v32, v32, v33
v_add_f32 v33, v34, v35
ds_write_b64 v52, v[32:33]
s_waitcnt lgkmcnt(0)
s_barrier
ds_read2st64_b64 v[36:39], v53 offset0:0 offset1:1
ds_read2st64_b64 v[40:43], v53 offset0:2 offset1:3
ds_read2st64_b64 v[44:47], v53 offset0:4 offset1:5
ds_read2st64_b64 v[48:51], v53 offset0:6 offset1:7
ds_read_b64 v[58:59], v15
s_waitcnt lgkmcnt(3)
v_pk_add_f32 v[36:37], v[36:37], v[38:39]
v_pk_add_f32 v[40:41], v[40:41], v[42:43]
s_waitcnt lgkmcnt(1)
v_pk_add_f32 v[44:45], v[44:45], v[46:47]
v_pk_add_f32 v[48:49], v[48:49], v[50:51]
v_pk_add_f32 v[36:37], v[36:37], v[40:41]
v_pk_add_f32 v[44:45], v[44:45], v[48:49]
v_pk_add_f32 v[36:37], v[36:37], v[44:45]
s_waitcnt lgkmcnt(0)
v_fma_f32 v36, -v58, v37, v36
v_mul_f32 v36, v36, v59
''')
bf16r('v36')
a('''
v_mov_b32_dpp v37, v36 row_ror:8 row_mask:0xf bank_mask:0xf
v_cndmask_b32 v38, v37, v36, s[60:61]
v_mul_f32 v36, v36, v37
v_cmp_lt_f32 vcc, 0, v38
v_cvt_pk_bf16_f32 v36, v36, v36
v_cndmask_b32 v36, 0, v36, vcc
''')
for i in range(8):
    a(f'v_and_b32 v{40+i}, v36, v{64+i}')
a('''
v_mfma_f32_16x16x32_bf16 v[48:51], v[40:43], v[16:19], 0
v_mfma_f32_16x16x32_bf16 v[48:51], v[44:47], v[20:23], v[48:51]
v_pk_add_f32 v[48:49], v[48:49], v[50:51]
v_add_f32 v44, v48, v49
''')
swap16_reduce('add', 'v44', 'v45')
a('s_mov_b64 exec, s[58:59]')
tag('v44')
publish('dword', 'v44', 'v54', 's56', False)
a('s_mov_b64 exec, -1')
stamp(12)
a.label('L_wend')
endwave()

a.label('L_fstage')
a(f'''
s_sub_u32 s60, s5, 16
v_and_b32 v52, 7, v0
v_lshlrev_b32 v52, 4, v52
v_lshl_add_u32 v52, v3, 2, v52
s_lshl_b32 s56, s54, 7
s_add_u32 s56, s56, {L_RB}
v_add_u32 v52, s56, v52
s_lshl_b32 s55, s60, 13
s_lshl_b32 s56, s54, 10
s_add_u32 s55, s55, s56
s_add_u32 s55, s55, {WS_Y}
s_cmp_eq_u32 s4, 7
s_cbranch_scc1 L_fin
v_lshrrev_b32 v53, 1, v8
v_lshlrev_b32 v53, 4, v53
v_lshl_add_u32 v53, v3, 2, v53
v_and_b32 v55, 1, v0
v_lshl_add_u32 v53, v55, 1, v53
v_lshlrev_b32 v55, 1, v53
s_lshl_b32 s56, s60, 6
buffer_load_dword v60, v55, {sX}, s56 offen
v_lshlrev_b32 v53, 2, v53
v_add_u32 v53, {L_RB}, v53
''')
for i in range(4):
    a(f'v_cmp_eq_u32 vcc, {i}, v4')
    a(f'v_cndmask_b32 v{64+i}, 0, -1, vcc')
    a(f'v_cmp_eq_u32 vcc, {8+i}, v4')
    a(f'v_cndmask_b32 v{68+i}, 0, -1, vcc')
a(f'''
v_mov_b32 v74, 0x3f803f80
v_cmp_eq_u32 vcc, 4, v4
v_cndmask_b32 v72, 0, v74, vcc
v_cmp_eq_u32 vcc, 12, v4
v_cndmask_b32 v73, 0, v74, vcc
v_lshrrev_b32 v54, 1, v3
v_lshlrev_b32 v54, 8, v54
v_lshl_add_u32 v54, v4, 4, v54
v_and_b32 v55, 1, v3
v_lshl_add_u32 v54, v55, 3, v54
s_lshl_b32 s56, s4, 3
s_add_u32 s56, s56, s54
s_lshl_b32 s56, s56, 4
s_add_u32 s56, s56, s60
s_lshl_b32 s56, s56, 9
s_add_u32 s56, s56, {WS_GU}
s_waitcnt vmcnt(0)
v_lshlrev_b32 v61, 16, v60
v_and_b32 v62, 0xffff0000, v60
s_barrier
''')
stamp(7)
for mtx in range(2):
    for e in range(2):
        for hh in range(2):
            d = 16 + mtx * 8 + e * 4 + hh * 2
            a(f'ds_read_b64_tr_b16 v[{d}:{d+1}], v{13+e} offset:{mtx*16384 + hh*8192}')
poll4(32, 'v2', 's55', 'v56', False)
stamp(8)
reduce8(32)
a('''
ds_write_b32 v52, v32
s_waitcnt lgkmcnt(0)
s_barrier
ds_read2_b64 v[36:39], v53 offset0:0 offset1:16
ds_read2_b64 v[40:43], v53 offset0:32 offset1:48
ds_read2_b64 v[44:47], v53 offset0:64 offset1:80
ds_read2_b64 v[48:51], v53 offset0:96 offset1:112
s_waitcnt lgkmcnt(2)
v_pk_add_f32 v[36:37], v[36:37], v[38:39]
v_pk_add_f32 v[40:41], v[40:41], v[42:43]
s_waitcnt lgkmcnt(0)
v_pk_add_f32 v[44:45], v[44:45], v[46:47]
v_pk_add_f32 v[48:49], v[48:49], v[50:51]
v_pk_add_f32 v[36:37], v[36:37], v[40:41]
v_pk_add_f32 v[44:45], v[44:45], v[48:49]
v_pk_add_f32 v[36:37], v[36:37], v[44:45]
v_cvt_pk_bf16_f32 v38, v36, v37
v_lshlrev_b32 v36, 16, v38
v_and_b32 v37, 0xffff0000, v38
v_add_f32 v36, v36, v61
v_add_f32 v37, v37, v62
v_cvt_pk_bf16_f32 v38, v36, v37
''')
for i in range(4):
    a(f'v_and_or_b32 v{40+i}, v38, v{64+i}, v72')
for i in range(4):
    a(f'v_and_or_b32 v{44+i}, v38, v{68+i}, v73')
a('''
v_mfma_f32_16x16x32_bf16 v[48:51], v[40:43], v[16:19], 0
v_mfma_f32_16x16x32_bf16 v[76:79], v[40:43], v[24:27], 0
v_mfma_f32_16x16x32_bf16 v[48:51], v[44:47], v[20:23], v[48:51]
v_mfma_f32_16x16x32_bf16 v[76:79], v[44:47], v[28:31], v[76:79]
v_pk_add_f32 v[48:49], v[48:49], v[50:51]
v_pk_add_f32 v[76:77], v[76:77], v[78:79]
v_add_f32 v58, v48, v49
v_add_f32 v59, v76, v77
''')
tag('v58'); tag('v59')
publish('dwordx2', 'v[58:59]', 'v54', 's56', True)
stamp(9)
endwave()

a.label('L_fin')
poll4(32, 'v2', 's55', 'v56', False)
stamp(8)
reduce8(32)
a(f'''
ds_write_b32 v52, v32
s_waitcnt lgkmcnt(0)
s_barrier
s_cmp_eq_u32 s54, 7
s_cbranch_scc1 L_wend2
s_mul_i32 s55, s60, 7168
s_lshl_b32 s56, s54, 10
s_add_u32 s55, s55, s56
s_add_u32 s55, s55, {WS_Z}
''')
poll4(32, 'v2', 's55', 'v56', False)
stamp(11)
reduce8(32)
a('''
ds_write_b32 v52, v32 offset:1024
s_waitcnt lgkmcnt(0)
s_barrier
''')
a.label('L_wend2')
endwave()

a.label('L_helper')
a(f'''
s_setprio 3
buffer_load_dwordx4 v[8:11], v2, {sX}, 0 offen
v_lshlrev_b32 v5, 1, v3
v_and_b32 v6, 7, v0
v_xor_b32 v5, v5, v6
v_lshlrev_b32 v5, 4, v5
v_lshrrev_b32 v6, 3, v0
v_lshl_add_u32 v5, v6, 13, v5
s_lshr_b32 s60, s5, 3
s_and_b32 s61, s5, 7
s_lshl_b32 s54, s60, 20
s_lshl_b32 s55, s4, 10
s_add_u32 s54, s54, s55
s_lshl_b32 s55, s61, 7
s_add_u32 s54, s54, s55
''')
for i in range(16):
    a(f's_mov_b32 m0, {L_WQ + i*1024}')
    a(f'buffer_load_dwordx4 v5, {sWQ}, s54 offen nt lds')
    a('s_add_u32 s54, s54, 65536')
a('s_barrier')
stamp(1)
a(f'''
v_lshrrev_b32 v5, 2, v0
v_bfe_u32 v6, v0, 3, 2
v_lshlrev_b32 v6, 5, v6
v_lshl_add_u32 v6, v5, 7, v6
v_and_b32 v7, 3, v0
v_lshl_add_u32 v6, v7, 3, v6
v_add_u32 v120, {L_WQ}, v6
v_xor_b32 v121, 32, v120
v_xor_b32 v122, 64, v120
v_xor_b32 v123, 96, v120
s_lshl_b32 s55, s60, 8
s_add_u32 s55, s55, {L_XN}
v_lshl_add_u32 v124, v3, 3, s55
v_add_u32 v125, {L_XN}, v2
s_waitcnt vmcnt(16)
''')
stamp(2)
for i in range(4):
    a(f'v_lshlrev_b32 v{12+2*i}, 16, v{8+i}')
    a(f'v_and_b32 v{13+2*i}, 0xffff0000, v{8+i}')
a('''
v_pk_add_f32 v[20:21], v[12:13], v[14:15]
v_pk_add_f32 v[22:23], v[16:17], v[18:19]
v_pk_add_f32 v[20:21], v[20:21], v[22:23]
v_add_f32 v20, v20, v21
''')
allreduce('add', 'v20', 'v21')
a('v_mul_f32 v20, 0x3b000000, v20')
for i in range(8):
    a(f'v_sub_f32 v{24+i}, v{12+i}, v20')
a('v_mul_f32 v21, v24, v24')
a('v_mul_f32 v22, v25, v25')
for i in range(2, 8):
    a(f'v_fmac_f32 v{21+(i&1)}, v{24+i}, v{24+i}')
a('v_add_f32 v21, v21, v22')
bf16r('v20')
allreduce('add', 'v21', 'v22')
a('v_mul_f32 v21, 0x3b000000, v21')
bf16r('v21')
a('v_add_f32 v21, 0x3727c5ac, v21')
bf16r('v21')
a('v_sqrt_f32 v21, v21')
for i in range(8):
    a(f'v_sub_f32 v{24+i}, v{12+i}, v20')
bf16r('v21')
a('v_rcp_f32 v21, v21')
for i in range(4):
    a(f'v_cvt_pk_bf16_f32 v{8+i}, v{24+2*i}, v{25+2*i}')
for i in range(4):
    a(f'v_lshlrev_b32 v{24+2*i}, 16, v{8+i}')
    a(f'v_and_b32 v{25+2*i}, 0xffff0000, v{8+i}')
for i in range(8):
    a(f'v_mul_f32 v{24+i}, v{24+i}, v21')
for i in range(4):
    a(f'v_cvt_pk_bf16_f32 v{8+i}, v{24+2*i}, v{25+2*i}')
a('ds_write_b128 v125, v[8:11]')
for t in range(4):
    a(f'ds_read2_b64 v[{12+4*t}:{15+4*t}], v124 offset0:{8*t} offset1:{8*t+4}')
a('s_waitcnt lgkmcnt(0)')
get_tags()
a(f'''
v_lshlrev_b32 v7, 2, v0
s_lshl_b32 s54, s4, 13
s_lshl_b32 s55, s60, 11
s_add_u32 s55, s55, s54
s_lshl_b32 s56, s61, 8
s_add_u32 s55, s55, s56
s_add_u32 s55, s55, {WS_QP}
s_add_u32 s54, s54, {WS_QP}
v_add_u32 v6, 4096, v2
v_cmp_eq_u32 s[56:57], 1, v3
v_cmp_eq_u32 s[58:59], 2, v3
v_cmp_eq_u32 s[60:61], 3, v3
''')
stamp(3)
for t in range(4):
    a(f's_waitcnt vmcnt({12 - 4*t})')
    for ct in range(4):
        for hh in range(2):
            d = 32 + (t * 4 + ct) * 4 + hh * 2
            a(f'ds_read_b64_tr_b16 v[{d}:{d+1}], v{120+ct} offset:{t*4096 + hh*2048}')
    if t > 0:
        tt = t - 1
        a('s_waitcnt lgkmcnt(8)')
        for ct in range(4):
            d = 32 + (tt * 4 + ct) * 4
            acc = f'v[{96+4*ct}:{99+4*ct}]'
            a(f'v_mfma_f32_16x16x32_bf16 {acc}, v[{12+4*tt}:{15+4*tt}], v[{d}:{d+3}], {acc if tt else 0}')
for ct in range(4):
    a(f's_waitcnt lgkmcnt({6 - 2*ct})')
    d = 32 + (12 + ct) * 4
    acc = f'v[{96+4*ct}:{99+4*ct}]'
    a(f'v_mfma_f32_16x16x32_bf16 {acc}, v[24:27], v[{d}:{d+3}], {acc}')
stamp(4)
a('''
v_cndmask_b32 v96, v96, v100, s[56:57]
v_cndmask_b32 v96, v96, v104, s[58:59]
v_cndmask_b32 v96, v96, v108, s[60:61]
''')
tag('v96')
publish('dword', 'v96', 'v7', 's55', True)
stamp(5)
def q_issue(base):
    for i in range(8):
        a(f'buffer_load_dwordx4 v[{base+4*i}:{base+3+4*i}], {"v2" if i < 4 else "v6"}, {sWS}, s54 offen offset:{(i & 3)*1024} sc1')
def q_check(base, later):
    a('v_mov_b32 v8, 0')
    for i in range(8):
        a(f's_waitcnt vmcnt({later + 7 - i})')
        for c in range(4):
            a(f'v_xor_b32 v{base+4*i+c}, v{base+4*i+c}, v1')
        a(f'v_or3_b32 v8, v8, v{base+4*i}, v{base+4*i+1}')
        a(f'v_or3_b32 v8, v8, v{base+4*i+2}, v{base+4*i+3}')
    a('v_and_b32 v8, 0xff, v8')
    a('v_cmp_ne_u32 vcc, 0, v8')
def q_toggle():
    a('s_sub_u32 s53, s53, 1')
    a('s_cbranch_scc1 L_q_doneA')
    a(f's_cmp_lt_u32 s53, {SPIN_G - 8}')
    a(f's_cselect_b32 s62, {WS_B}, 0')
    a('s_xor_b32 s54, s54, s62')
a(f's_mov_b32 s53, {SPIN_G}')
if QDELAY: a(f's_sleep {QDELAY}')
q_issue(32)
if QGAP: a(f's_sleep {QGAP}')
a.label('L_q_loop')
q_issue(64)
q_check(32, 8)
a('s_cbranch_vccz L_q_doneA')
q_toggle()
q_issue(32)
q_check(64, 8)
a('s_cbranch_vccz L_q_doneB')
q_toggle()
a('s_branch L_q_loop')
def q_sum(base):
    for h in range(2):
        for c in (0, 2):
            r = lambda k: f'v[{base+4*(2*k+h)+c}:{base+1+4*(2*k+h)+c}]'
            a(f'v_pk_add_f32 {r(0)}, {r(0)}, {r(1)}')
            a(f'v_pk_add_f32 {r(2)}, {r(2)}, {r(3)}')
            a(f'v_pk_add_f32 {r(0)}, {r(0)}, {r(2)}')
    for i in range(4):
        a(f'v_cvt_pk_bf16_f32 v{8+i}, v{base+2*i}, v{base+2*i+1}')
a.label('L_q_doneB')
q_sum(64)
a('s_branch L_q_done')
a.label('L_q_doneA')
q_sum(32)
a.label('L_q_done')
stamp(6)
a(f'''
v_lshlrev_b32 v12, 3, v0
v_add_u32 v12, {L_Q}, v12
ds_write_b64 v12, v[8:9]
ds_write_b64 v12, v[10:11] offset:512
''')
lds_signal(F_Q, 'v13', 'v14')
stamp(7)
a('''
s_waitcnt vmcnt(0) lgkmcnt(0)
s_cmp_ge_u32 s5, 16
s_cbranch_scc1 L_hf
''')
a(f'''
s_lshl_b32 s54, s4, 11
s_lshr_b32 s55, s5, 3
s_lshl_b32 s55, s55, 10
s_add_u32 s54, s54, s55
s_add_u32 s54, s54, {WS_ST}
s_mov_b32 s58, {LOG2E}
v_lshlrev_b32 v6, 2, v0
v_add_u32 v6, {L_WG}, v6
s_barrier
''')
poll_rec(8, 'v2', 's54', 'v12', True)
stamp(8)
a('v_mov_b32 v14, v8')
row16_reduce('max', 'v14')
swap16_reduce('max', 'v14', 'v15')
a(f'''
v_sub_f32 v8, v8, v14
v_mul_f32 v8, s58, v8
v_exp_f32 v8, v8
v_mul_f32 v9, v8, v9
''')
row16_reduce('add', 'v9')
swap16_reduce('add', 'v9', 'v15')
a(f'''
v_rcp_f32 v9, v9
v_mul_f32 v8, v8, v9
ds_write_b32 v6, v8
s_waitcnt lgkmcnt(0)
s_barrier
s_cmp_eq_u32 s4, 7
s_cbranch_scc1 L_hend
v_lshlrev_b32 v6, 4, v4
s_lshl_b32 s54, s4, 8
s_add_u32 s54, s54, {WS_FS}
v_mov_b32 v7, {L_MU}
s_barrier
s_barrier
''')
poll_rec(8, 'v6', 's54', 'v12', True)
stamp(9)
row16_reduce2('add', 'v8', 'v9')
a('''
v_mul_f32 v8, 0x3b000000, v8
v_mul_f32 v9, 0x3b000000, v9
v_fma_f32 v9, -v8, v8, v9
v_max_f32 v9, 0, v9
''')
bf16r('v9')
a('v_add_f32 v9, 0x3727c5ac, v9')
bf16r('v9')
a('v_sqrt_f32 v9, v9')
bf16r('v8')
bf16r('v9')
a('v_rcp_f32 v9, v9')
a(f'''
ds_write_b64 v7, v[8:9]
s_waitcnt lgkmcnt(0)
s_barrier
''')
a.label('L_hend')
endwave()

a.label('L_hf')
a(f'''
s_sub_u32 s60, s5, 16
v_and_b32 v5, 31, v0
v_lshlrev_b32 v6, 1, v5
s_lshl_b32 s54, s60, 6
buffer_load_ushort v20, v6, {sX}, s54 offen
v_lshlrev_b32 v7, 2, v5
v_add_u32 v7, {L_RB}, v7
s_lshl_b32 s55, s60, 4
s_lshl_b32 s56, s4, 8
s_add_u32 s55, s55, s56
s_add_u32 s55, s55, {WS_FS}
v_mov_b32 v26, s51
v_mov_b32 v27, s52
v_mov_b32 v28, 0
v_mov_b32 v22, s7
s_waitcnt vmcnt(0)
v_lshlrev_b32 v20, 16, v20
s_barrier
s_barrier
s_cmp_eq_u32 s4, 7
s_cbranch_scc1 L_hf_nob3
s_barrier
''')
a.label('L_hf_nob3')
for i in range(4):
    a(f'ds_read2_b32 v[{8+2*i}:{9+2*i}], v7 offset0:{64*i} offset1:{64*i+32}')
a('''
s_waitcnt lgkmcnt(0)
v_add_f32 v8, v8, v9
v_add_f32 v10, v10, v11
v_add_f32 v12, v12, v13
v_add_f32 v14, v14, v15
v_add_f32 v8, v8, v10
v_add_f32 v12, v12, v14
v_add_f32 v8, v8, v12
''')
bf16r('v8')
a('v_add_f32 v8, v8, v20')
bf16r('v8')
a('s_cmp_eq_u32 s4, 7')
a('s_cbranch_scc1 L_hfin')
a('''
v_mov_b32 v24, v8
v_mul_f32 v25, v8, v8
''')
row16_reduce2('add', 'v24', 'v25')
a('''
v_mov_b32 v9, v24
v_mov_b32 v10, v25
v_permlane16_swap_b32 v24, v9
v_permlane16_swap_b32 v25, v10
v_add_f32 v24, v24, v9
v_add_f32 v25, v25, v10
''')
a('s_mov_b64 exec, 1')
tag('v24'); tag('v25')
publish('dwordx4', 'v[24:27]', 'v28', 's55', True)
a('s_mov_b64 exec, -1')
stamp(9)
endwave()

a.label('L_hfin')
a('''
v_mov_b32 v20, v8
s_mov_b32 s56, -1
s_mov_b32 s57, 0
v_add_u32 v7, 1024, v7
s_barrier
''')
stamp(11)
for i in range(3):
    a(f'ds_read2_b32 v[{8+2*i}:{9+2*i}], v7 offset0:{64*i} offset1:{64*i+32}')
a('ds_read_b32 v14, v7 offset:768')
a('''
s_waitcnt lgkmcnt(0)
v_add_f32 v8, v8, v9
v_add_f32 v10, v10, v11
v_add_f32 v12, v12, v13
v_add_f32 v8, v8, v10
v_add_f32 v12, v12, v14
v_add_f32 v8, v8, v12
''')
bf16r('v8')
a('v_add_f32 v8, v8, v20')
a('v_cvt_pk_bf16_f32 v8, v8, v8')
a('s_mov_b64 exec, s[56:57]')
a(f'buffer_store_short v8, v6, {sOUT}, s54 offen')
a('s_cmp_lg_u32 s60, 0')
a('s_cbranch_scc1 L_hend3')
a('s_mov_b64 exec, 1')
a(f'buffer_store_dword v22, v28, {sWS}, 0 offen')
a.label('L_hend3')
a('s_mov_b64 exec, -1')
stamp(12)
endwave()
a.label('L_exit')
a('s_endpgm')

body = a.finish()
hdr = open(f'cdna_kernels/{NAME}.s.ref').read().split('\n')
comments = [l for l in hdr if l.startswith(';') and '@launch' not in l]
out = '\n'.join(comments) + f'\n; @launch grid=(256,1,1) block=(640,1,1) lds={LDS_BYTES}\n'
out += f'''.amdgcn_target "amdgcn-amd-amdhsa--gfx950"
.text
.globl {NAME}_kernel
.p2align 8
.type {NAME}_kernel,@function
{NAME}_kernel:
{body}
.section .rodata,"a"
.p2align 6
.amdhsa_kernel {NAME}_kernel
  .amdhsa_next_free_vgpr 128
  .amdhsa_next_free_sgpr 100
  .amdhsa_accum_offset 128
  .amdhsa_group_segment_fixed_size 0
  .amdhsa_kernarg_size 96
  .amdhsa_user_sgpr_count 2
  .amdhsa_user_sgpr_kernarg_segment_ptr 1
  .amdhsa_system_sgpr_workgroup_id_x 1
.end_amdhsa_kernel
'''
dst = [x for x in sys.argv[1:] if not x.startswith('--')]
open(dst[0] if dst else f'cdna_kernels/{NAME}.s', 'w').write(out)
```
